```python
import torch

def _softmax(x, axis=-1):
    return torch.softmax(x, dim=axis)
def _gelu(x):
    return torch.nn.functional.gelu(x, approximate="tanh")
def _silu(x):
    return torch.nn.functional.silu(x)
def _sigmoid(x):
    return torch.sigmoid(x)
def _layernorm(x, axis=-1, eps=1e-5):
    m = x.mean(dim=axis, keepdim=True)
    v = x.var(dim=axis, keepdim=True, unbiased=False)
    return (x - m) / torch.sqrt(v + eps)
def _scatter_add(tgt, idx, src, axis=0):
    return tgt.clone().index_add_(axis, idx, src)
def _segment_sum(src, seg, n):
    out = torch.zeros((n,) + src.shape[1:], dtype=src.dtype)
    return out.index_add_(0, seg, src)
def _pad(x, pw):
    flat = tuple(v for pair in reversed(pw) for v in pair)
    return torch.nn.functional.pad(x, flat)

kernel_name = 'interleave_layers__spectral_gfnet__dense_activation_gelu__prompt'

def setup_inputs():

    _w = (lambda a: (lambda t: t.to(torch.bfloat16) if t.is_floating_point() else t)(torch.as_tensor(a)))
    def _A_setup():
        B, S, D = 1, 2048, 640
        Df = D // 2 + 1
        return {
            "x": _w((lambda *s: torch.randn(*s, dtype=torch.bfloat16) * 0.05)(B, S, D)),
            "w_r": _w((lambda *s: torch.randn(*s, dtype=torch.bfloat16) * 0.4)(S, Df) * 0.02),
            "w_i": _w((lambda *s: torch.randn(*s, dtype=torch.bfloat16) * 0.4)(S, Df) * 0.02),
        }
    _A_in = _A_setup()

    def _B_setup():
        B, S, D, F = 1, 2048, 640, 1536
        return {
            "x": _w((lambda *s: torch.randn(*s, dtype=torch.bfloat16) * 0.05)(B, S, D)),
            "w1": _w((lambda *s: torch.randn(*s, dtype=torch.bfloat16) * 0.4)(D, F) * (D ** -0.5)),
            "b1": _w((lambda *s: torch.randn(*s, dtype=torch.bfloat16) * 12.8)(F) * 0.01),
            "w2": _w((lambda *s: torch.randn(*s, dtype=torch.bfloat16) * 0.1)(F, D) * (F ** -0.5)),
            "b2": _w((lambda *s: torch.randn(*s, dtype=torch.bfloat16) * 0.8)(D) * 0.01),
        }
    _B_in = _B_setup()

    return {
        "A_x": _A_in["x"],
        "A_w_r": _A_in["w_r"],
        "A_w_i": _A_in["w_i"],
        "B_x": _B_in["x"],
        "B_w1": _B_in["w1"],
        "B_b1": _B_in["b1"],
        "B_w2": _B_in["w2"],
        "B_b2": _B_in["b2"],
    }

def reference(A_x, A_w_r, A_w_i, B_x, B_w1, B_b1, B_w2, B_b2):
    def _A_ref(x, w_r, w_i):
        B, S, D = x.shape
        X = (lambda x, axes=(-2,-1): torch.fft.rfft2(x.float(), dim=axes))(x, axes=(-2, -1))
        W = w_r + 1j * w_i
        X = X * W
        y = (lambda x, s, axes=(-2,-1): torch.fft.irfft2(x, s=s, dim=axes).to(torch.bfloat16))(X, (S, D), axes=(-2, -1))
        return y

    def _B_ref(x, w1, b1, w2, b2):
        h = torch.einsum("bsd,df->bsf", x, w1) + b1
        h = _gelu(h)
        return torch.einsum("bsf,fd->bsd", h, w2) + b2

    x = A_x
    x = x + _A_ref(_layernorm(x, axis=-1), A_w_r, A_w_i)
    x = x + _B_ref(_layernorm(x, axis=-1), B_w1, B_b1, B_w2, B_b2)
    x = x + _A_ref(_layernorm(x, axis=-1), A_w_r, A_w_i)
    x = x + _B_ref(_layernorm(x, axis=-1), B_w1, B_b1, B_w2, B_b2)
    return x
```

```python
import re

TRANS = ("v_exp_f32","v_log_f32","v_rcp_f32","v_rsq_f32","v_sqrt_f32","v_sin_f32","v_cos_f32","v_rcp_iflag_f32")

def regs_of(tok):
    tok = tok.strip()
    tok = tok.lstrip('-')
    m = re.fullmatch(r"abs\((.*)\)", tok) or re.fullmatch(r"\|(.*)\|", tok)
    if m: tok = m.group(1)
    m = re.fullmatch(r"([vas])(\d+)", tok)
    if m: return {(m.group(1), int(m.group(2)))}
    m = re.fullmatch(r"([vas])\[(\d+):(\d+)\]", tok)
    if m: return {(m.group(1), i) for i in range(int(m.group(2)), int(m.group(3)) + 1)}
    if tok in ("vcc",): return {("s", "vcc")}
    if tok in ("exec",): return {("s", "exec")}
    if tok == "m0": return {("s", "m0")}
    return set()

class Ins:
    def __init__(self, text):
        self.text = text
        t = text.split(";")[0].strip()
        self.label = t.endswith(":")
        self.directive = t.startswith(".")
        self.w = set(); self.r = set(); self.srcc = set(); self.ab = set()
        self.mn = ""
        self.kind = "other"
        if self.label or self.directive or not t:
            self.kind = "none"; return
        parts = t.split(None, 1)
        mn = parts[0]; self.mn = mn
        rest = parts[1] if len(parts) > 1 else ""
        ops = []; depth = 0; cur = ""
        for ch in rest:
            if ch in "[(": depth += 1
            if ch in "])": depth -= 1
            if ch == "," and depth == 0: ops.append(cur.strip()); cur = ""
            else: cur += ch
        if cur.strip(): ops.append(cur.strip())
        if ops:
            last = ops[-1].split()
            self.mods = last[1:]; ops[-1] = last[0] if last else ""
        else: self.mods = []
        self.ops = ops
        R = [regs_of(o) for o in ops]
        base = re.sub(r"_(e32|e64|dpp|sdwa)$", "", mn)
        self.base = base
        self.dpp = mn.endswith("_dpp")
        if mn.startswith("v_mfma"):
            self.kind = "mfma"
            self.w = R[0]; self.ab = R[1] | R[2]; self.srcc = R[3]; self.r = self.ab | self.srcc
            self.passes = 8 if "32x32x16" in mn else 4 if "16x16x32" in mn else 2 if "4x4x4" in mn else None
            assert self.passes, mn
        elif mn.startswith("v_"):
            self.kind = "valu"
            self.trans = base in TRANS
            if base in ("v_swap_b32", "v_permlane32_swap_b32", "v_permlane16_swap_b32"):
                self.w = R[0] | R[1]; self.r = R[0] | R[1]
            elif base.startswith("v_cmp"):
                self.w = R[0]; self.r = set().union(*R[1:])
                if base.startswith("v_cmpx"): self.w |= {("s", "exec")}
            elif base in ("v_add_co_u32", "v_sub_co_u32", "v_addc_co_u32", "v_subb_co_u32", "v_mad_u64_u32"):
                self.w = R[0] | R[1]; self.r = set().union(*R[2:])
            else:
                self.w = R[0]; self.r = set().union(*R[1:]) if len(R) > 1 else set()
                if base in ("v_fmac_f32", "v_dot2c_f32_bf16", "v_pk_fmac_f16", "v_writelane_b32") or self.dpp: self.r |= R[0]
            self.dot = base.startswith("v_dot")
        elif mn.startswith("buffer_") or mn.startswith("global_"):
            self.kind = "vmem"
            self.lds = "lds" in self.mods or "_lds_" in mn
            if mn in ("buffer_wbl2", "buffer_inv"): return
            if "store" in mn or ("atomic" in mn):
                self.r = set().union(*R)
                self.store = True
                self.data = R[0] if mn.startswith("buffer_") else R[1]
                self.wide = ("x3" in mn or "x4" in mn)
                if "atomic" in mn and "sc0" in self.mods: self.w = R[0]
            elif self.lds:
                self.r = set().union(*R) | {("s", "m0")}
            else:
                self.w = R[0]; self.r = set().union(*R[1:])
        elif mn.startswith("ds_"):
            self.kind = "ds"
            if "write" in mn or mn.startswith("ds_add"): self.r = set().union(*R)
            else: self.w = R[0]; self.r = set().union(*R[1:])
        elif mn.startswith("s_"):
            self.kind = "salu"
            if mn.startswith("s_nop"): self.nop = int(ops[0], 0) + 1
            elif mn.startswith(("s_cmp", "s_waitcnt", "s_barrier", "s_branch", "s_cbranch", "s_endpgm", "s_setprio", "s_sleep")):
                self.r = set().union(*R) if R else set()
            else:
                self.w = R[0] if R else set(); self.r = set().union(*R[1:]) if len(R) > 1 else set()
                if "saveexec" in mn: self.w |= {("s", "exec")}

def need(p, c):
    n = 0
    isv = lambda S: {x for x in S if x[0] in "va"}
    iss = lambda S: {x for x in S if x[0] == "s"}
    if p.kind == "valu":
        pw = isv(p.w); ps = iss(p.w)
        if c.kind == "mfma" and pw & c.r: n = max(n, 3 if getattr(p, "dot", False) else 2)
        if c.kind == "mfma" and ("s", "exec") in ps: n = max(n, 4)
        if c.kind == "valu":
            if c.dpp and pw & c.r: n = max(n, 2)
            if c.dpp and ("s", "exec") in ps: n = max(n, 5)
            if c.base.startswith("v_permlane") and pw & c.r: n = max(n, 2)
            if c.base in ("v_readlane_b32", "v_readfirstlane_b32") and pw & c.r: n = max(n, 1)
            if p.trans and not c.trans and pw & c.r: n = max(n, 1)
            if p.trans and c.trans and pw & c.r: n = max(n, 1)
            if ps & c.r: n = max(n, 4 if c.base in ("v_readlane_b32", "v_writelane_b32") else 2)
            if getattr(p, "dot", False) and (pw & (c.r | c.w)) and not (c.base == p.base): n = max(n, 3)
            if p.mn.endswith("_sdwa") and pw & (c.r | c.w): n = max(n, 1)
        if c.kind in ("vmem", "ds") and p.trans and pw & c.r: n = max(n, 1)
        if c.kind == "vmem" and ps & c.r: n = max(n, 5)
        if c.kind == "salu" and ps & c.r: n = max(n, 1)
    if p.kind == "mfma":
        far = {2: 5, 4: 8, 8: 12}[p.passes]
        if c.kind == "mfma":
            if p.w & c.ab: n = max(n, far)
            if p.w & c.srcc:
                if p.w == c.srcc and p.passes == c.passes: n = max(n, 2 if p.passes == 2 else 0)
                else: n = max(n, {2: 4, 4: 6, 8: 10}[p.passes])
            elif p.w & c.w: n = max(n, far)
        elif c.kind in ("valu", "vmem", "ds"):
            if p.w & (c.r | c.w): n = max(n, far)
            if c.kind == "valu" and p.srcc & c.w: n = max(n, {2: 1, 4: 3, 8: 7}[p.passes])
    if p.kind == "vmem" and getattr(p, "store", False) and p.wide:
        if p.data & c.w: n = max(n, 2)
    if p.kind == "ds" and ("b128" in p.mn or "b96" in p.mn) and "write" in p.mn:
        pass
    if p.kind == "salu" and ("s", "m0") in p.w:
        if c.kind == "vmem" and getattr(c, "lds", False): n = max(n, 1)
    return n

def pad_hazards(lines):
    out = []
    hist = []
    for ln in lines:
        c = Ins(ln)
        if c.kind == "none":
            out.append(ln); continue
        req = 0
        d = 0
        for p in reversed(hist):
            k = need(p, c)
            if k - d > req: req = k - d
            d += getattr(p, "nop", 1)
            if d > 20: break
        while req > 0:
            k = min(req, 16)
            nop = "    s_nop %d" % (k - 1)
            out.append(nop); hist.append(Ins(nop)); req -= k
        out.append(ln); hist.append(c)
        if len(hist) > 64: hist = hist[-32:]
    return out

class Kern:
    def __init__(self, name, grid, block, lds, nv, na=0, ns=96):
        self.name, self.grid, self.block, self.lds = name, grid, block, lds
        self.nv, self.na, self.ns = nv, na, ns
        self.L = []
    def e(self, s):
        for ln in s.split("\n"):
            ln = ln.strip()
            if not ln: continue
            self.L.append(ln if (ln.endswith(":") or ln.startswith(".")) else "    " + ln)
    def text(self):
        body = pad_hazards(self.L)
        return (f".globl {self.name}\n.p2align 8\n.type {self.name},@function\n{self.name}:\n" + "\n".join(body) + "\n")
    def desc(self):
        acc = (self.nv + 3) // 4 * 4
        tot = acc + self.na if self.na else self.nv
        return (f".p2align 6\n.amdhsa_kernel {self.name}\n  .amdhsa_next_free_vgpr {tot}\n  .amdhsa_next_free_sgpr {self.ns}\n"
                f"  .amdhsa_accum_offset {acc}\n  .amdhsa_group_segment_fixed_size 0\n  .amdhsa_kernarg_size 88\n"
                f"  .amdhsa_user_sgpr_count 2\n  .amdhsa_user_sgpr_kernarg_segment_ptr 1\n  .amdhsa_system_sgpr_workgroup_id_x 1\n"
                f"  .amdhsa_float_denorm_mode_32 3\n"
                f".end_amdhsa_kernel\n")
    def launch(self):
        return f"; @launch kernel={self.name} grid=({self.grid},1,1) block=({self.block},1,1) lds={self.lds}\n"

def v(i, n=1): return f"v{i}" if n == 1 else f"v[{i}:{i+n-1}]"
def a(i, n=1): return f"a{i}" if n == 1 else f"a[{i}:{i+n-1}]"
def s(i, n=1): return f"s{i}" if n == 1 else f"s[{i}:{i+n-1}]"
import struct
def fhex(x): return "0x%08x" % struct.unpack("<I", struct.pack("<f", x))[0]

def module(kernels, order, header=""):
    out = header
    for k in order: out += k.launch()
    out += '.amdgcn_target "amdgcn-amd-amdhsa--gfx950"\n.text\n'
    for k in kernels: out += k.text()
    out += '.section .rodata,"a"\n'
    for k in kernels: out += k.desc()
    return out
```

```python
from asmlib import *
from layout import *
import math
SRD3 = "0x00020000"

def srd(k, r, nbytes):
    k.e(f"s_mov_b32 s{r+2}, {nbytes}\ns_mov_b32 s{r+3}, {SRD3}")

def fgen_seeds(k, st, scb, vi, vg, T):
    c, jj, ph, amp, x = T+27, T+28, T+29, T+30, T+31
    k.e(f"""
    s_lshr_b32 s40, s{st}, 1
    s_lshl_b32 s40, s40, 5
    s_and_b32 s41, s{st}, 1
    s_lshl_b32 s41, s41, 2
    s_add_u32 s40, s40, s41
    s_mul_i32 s41, s{scb}, 80
    s_add_u32 s40, s40, s41
    s_cmp_eq_u32 s{st}, 4
    s_cselect_b32 s41, 2, 3
    v_lshrrev_b32 {v(c)}, 2, {v(vi)}
    v_lshlrev_b32 {v(c)}, s41, {v(c)}
    v_and_b32 {v(x)}, 3, {v(vi)}
    v_add3_u32 {v(c)}, {v(c)}, {v(x)}, s40
    v_lshrrev_b32 {v(jj)}, 1, {v(c)}
    v_and_b32 {v(ph)}, 1, {v(c)}
    v_cvt_f32_u32 {v(ph)}, {v(ph)}
    v_mul_f32 {v(ph)}, {fhex(0.25)}, {v(ph)}
    v_mov_b32 {v(amp)}, {fhex(math.sqrt(2/640))}
    v_mov_b32 {v(x)}, {fhex(math.sqrt(1/640))}
    v_cmp_gt_u32 vcc, 2, {v(c)}
    v_cndmask_b32 {v(amp)}, {v(amp)}, {v(x)}, vcc
    v_cndmask_b32 {v(ph)}, {v(ph)}, 0, vcc
    v_mov_b32 {v(x)}, 320
    v_cmp_eq_u32 vcc, 0, {v(c)}
    v_cndmask_b32 {v(jj)}, {v(jj)}, {v(x)}, vcc
    v_and_b32 {v(T+26)}, 1, {v(jj)}
    v_mul_u32_u24 {v(T+26)}, 0x8000, {v(T+26)}
    v_lshl_or_b32 {v(T+26)}, {v(T+26)}, 16, {v(T+26)}
    v_lshlrev_b32 {v(x)}, 3, {v(vg)}
    v_mul_u32_u24 {v(x)}, {v(x)}, {v(jj)}
    v_cvt_f32_u32 {v(x)}, {v(x)}
    v_cvt_f32_u32 {v(jj)}, {v(jj)}
    s_mov_b32 s42, {fhex(1/640)}
    s_mov_b32 s43, {fhex(32.0)}
    v_mul_f32 {v(T+24)}, {fhex(0.05)}, {v(jj)}
    v_cos_f32 {v(T+24)}, {v(T+24)}
    v_fma_f32 {v(c)}, {v(jj)}, s43, {v(x)}
    v_add_f32 {v(T+24)}, {v(T+24)}, {v(T+24)}
    """)
    for e in range(8):
        k.e(f"""
        v_fma_f32 {v(T+e)}, {v(x)}, s42, {v(ph)}
        v_fma_f32 {v(T+8+e)}, {v(c)}, s42, {v(ph)}
        v_cos_f32 {v(T+e)}, {v(T+e)}
        v_cos_f32 {v(T+8+e)}, {v(T+8+e)}
        """)
        if e < 7: k.e(f"v_add_f32 {v(x)}, {v(x)}, {v(jj)}\nv_add_f32 {v(c)}, {v(c)}, {v(jj)}")
    for e in range(0, 16, 2):
        k.e(f"v_pk_mul_f32 {v(T+e,2)}, {v(T+e,2)}, {v(amp,2)} op_sel_hi:[1,0]")

def fgen_rest(k, st, vlane16, T):
    a0, a1 = T+27, T+28
    k.e(f"""
    s_lshl_b32 s40, s{st}, 10
    v_add_u32 {v(a0)}, s40, {v(vlane16)}
    v_add_u32 {v(a1)}, 51200, {v(a0)}
    """)
    for q in range(10):
        src = T if q % 2 == 0 else T+8
        oth = T+8 if q % 2 == 0 else T
        if q >= 2:
            for e in range(0, 8, 2):
                k.e(f"v_pk_fma_f32 {v(src+e,2)}, {v(oth+e,2)}, {v(T+24,2)}, {v(src+e,2)} op_sel_hi:[1,0,1] neg_lo:[0,0,1] neg_hi:[0,0,1]")
        for p in range(4):
            k.e(f"v_cvt_pk_bf16_f32 {v(T+16+p)}, {v(src+2*p)}, {v(src+2*p+1)}")
        k.e(f"ds_write_b128 {v(a0)}, {v(T+16,4)} offset:{q*5120}")
        for p in range(4):
            k.e(f"v_xor_b32 {v(T+20+p)}, {v(T+26)}, {v(T+16+p)}")
        k.e(f"ds_write_b128 {v(a1)}, {v(T+20,4)} offset:{q*5120}")

def unit_loop(k, nun, B, ACC, LB, vl0, vl1, swap, vm_after):
    def rd(q):
        base = vl0 if q < 10 else vl1
        for t in range(5):
            k.e(f"ds_read_b128 {v(LB+(q%2)*20+t*4,4)}, {v(base)} offset:{(q%10)*5120+t*1024}")
    rd(0)
    for q in range(20):
        if q < 19: rd(q+1)
        k.e(f"s_waitcnt vmcnt({min(63,(19-q)*nun+vm_after)})")
        for t in range(5):
            k.e(f"s_waitcnt lgkmcnt({(5 if q<19 else 0)+4-t})")
            for u in range(nun):
                A = v(LB+(q%2)*20+t*4, 4); Bf = v(B+(q*nun+u)*4, 4); C = v(ACC+(u*5+t)*4, 4)
                if swap: A, Bf = Bf, A
                k.e(f"v_mfma_f32_16x16x32_bf16 {C}, {A}, {Bf}, {C if q else 0}")

def build_k1():
    k = Kern("k1_kernel", 256, 512, 102400, 256)
    B, ACC, LB, T = 64, 144, 164, 8
    k.e(f"""
    s_cmp_ge_u32 s2, 256
    s_cbranch_scc1 K1_end
    s_load_dwordx2 s[16:17], s[0:1], 0
    s_load_dwordx2 s[20:21], s[0:1], 48
    s_load_dwordx2 s[8:9], s[0:1], 80
    s_load_dwordx2 s[24:25], s[0:1], 8
    s_load_dwordx2 s[28:29], s[0:1], 16
    s_load_dwordx2 s[32:33], s[0:1], 32
    s_load_dwordx2 s[36:37], s[0:1], 56
    v_lshrrev_b32 v1, 6, v0
    v_and_b32 v0, 63, v0
    v_readfirstlane_b32 s3, v1
    v_and_b32 v1, 15, v0
    v_lshrrev_b32 v2, 4, v0
    v_lshlrev_b32 v3, 4, v0
    v_add_u32 v4, 51200, v3
    s_and_b32 s4, s2, 7
    s_lshr_b32 s5, s2, 3
    s_and_b32 s6, s5, 7
    s_lshr_b32 s7, s5, 3
    s_lshl_b32 s4, s4, 2
    s_add_u32 s7, s7, s4
    s_mov_b32 s46, 0
    """)
    srd(k, 8, WSBYTES); srd(k, 16, XSZ); srd(k, 20, 1536*640*2); srd(k, 24, 2048*321*2); srd(k, 28, 2048*321*2); srd(k, 32, 640*1536*2); srd(k, 36, 1280)
    k.e(f"""
    v_mul_u32_u24 v5, 1280, v1
    v_lshl_add_u32 v5, v2, 4, v5
    s_cmp_eq_u32 s3, 7
    s_cbranch_scc1 K1_side
    s_cmp_gt_u32 s3, 4
    s_cbranch_scc1 K1_noseed
    """)
    fgen_seeds(k, 3, 6, 1, 2, T)
    k.e(f"""
    K1_noseed:
    s_waitcnt lgkmcnt(0)
    s_cmp_gt_u32 s3, 3
    s_cbranch_scc1 K1_w2
    s_lshl_b32 s44, s7, 2
    s_add_u32 s44, s44, s3
    s_mul_i32 s45, s44, {16*1280}
    """)
    for q in range(20): k.e(f"buffer_load_dwordx4 {v(B+4*q,4)}, v5, s[16:19], s45 offen offset:{64*q}")
    fgen_rest(k, 3, 3, T)
    k.e("s_waitcnt lgkmcnt(0)\ns_barrier\nK1_xloop:")
    unit_loop(k, 1, B, ACC, LB, 3, 4, False, 0)
    k.e(f"""
    s_cmp_eq_u32 s46, 1
    s_cbranch_scc1 K1_b2epi
    s_mul_i32 s45, s6, {10*32768}
    s_lshl_b32 s44, s44, 8
    s_add_u32 s45, s45, s44
    s_add_u32 s45, s45, {XH0}
    v_lshlrev_b32 v6, 15, v2
    v_lshl_add_u32 v6, v1, 4, v6
    v_lshrrev_b32 v7, 1, v2
    v_lshlrev_b32 v7, 15, v7
    v_lshl_add_u32 v7, v1, 4, v7
    v_and_b32 v8, 1, v2
    v_lshl_add_u32 v7, v8, 3, v7
    s_add_u32 s47, s45, {4*32768}
    s_add_u32 s48, s45, {8*32768}
    """)
    for p in range(10): k.e(f"v_cvt_pk_bf16_f32 {v(12+p)}, {v(ACC+2*p)}, {v(ACC+2*p+1)}")
    k.e(f"""
    buffer_store_dwordx4 v[12:15], v6, s[8:11], s45 offen
    buffer_store_dwordx4 v[16:19], v6, s[8:11], s47 offen
    buffer_store_dwordx2 v[20:21], v7, s[8:11], s48 offen
    s_endpgm
    K1_b2epi:
    s_mul_i32 s45, s6, 320
    s_add_u32 s45, s45, {B2P}
    v_lshlrev_b32 v6, 4, v2
    v_cmp_eq_u32 vcc, 0, v1
    s_and_saveexec_b64 s[50:51], vcc
    s_nop 7
    """)
    for t in range(5): k.e(f"buffer_store_dwordx4 {v(ACC+4*t,4)}, v6, s[8:11], s45 offen offset:{64*t}")
    k.e("s_endpgm")
    k.e(f"""
    K1_w2:
    s_mul_i32 s44, s7, 3
    s_add_u32 s44, s44, s3
    s_sub_u32 s44, s44, 4
    s_mul_i32 s45, s44, {16*1280}
    """)
    for q in range(20): k.e(f"buffer_load_dwordx4 {v(B+4*q,4)}, v5, s[20:23], s45 offen offset:{64*q}")
    k.e("s_cmp_gt_u32 s3, 4\ns_cbranch_scc1 K1_w2b")
    fgen_rest(k, 3, 3, T)
    k.e("K1_w2b:\ns_waitcnt lgkmcnt(0)\ns_barrier")
    unit_loop(k, 1, B, ACC, LB, 3, 4, True, 0)
    k.e(f"""
    s_lshr_b32 s45, s44, 1
    s_mul_i32 s47, s6, 48
    s_add_u32 s45, s45, s47
    s_mul_i32 s45, s45, 5120
    s_and_b32 s47, s44, 1
    s_lshl_b32 s47, s47, 9
    s_add_u32 s45, s45, s47
    s_add_u32 s45, s45, {W2P}
    s_add_u32 s47, s45, 4096
    v_lshrrev_b32 v7, 1, v2
    v_lshlrev_b32 v7, 8, v7
    v_lshl_add_u32 v7, v1, 4, v7
    v_and_b32 v8, 1, v2
    v_lshl_add_u32 v7, v8, 3, v7
    """)
    for p in range(10): k.e(f"v_cvt_pk_bf16_f32 {v(12+p)}, {v(ACC+2*p)}, {v(ACC+2*p+1)}")
    for t in range(4): k.e(f"buffer_store_dwordx2 {v(12+2*t,2)}, v7, s[8:11], s45 offen offset:{1024*t}")
    k.e("buffer_store_dwordx2 v[20:21], v7, s[8:11], s47 offen\ns_endpgm")
    ST, SL, WL, WO, WR = 144, 184, 8, 224, 64
    k.e(f"""
    K1_side:
    v_lshrrev_b32 v40, 3, v0
    v_and_b32 v41, 7, v0
    v_mul_u32_u24 v42, 1280, v40
    v_lshl_add_u32 v42, v41, 4, v42
    s_lshl_b32 s44, s7, 3
    s_add_u32 s44, s44, s6
    s_mul_i32 s45, s44, {8*1280}
    s_mul_i32 s47, s2, 3277
    s_lshr_b32 s47, s47, 16
    s_mul_i32 s48, s47, 20
    s_sub_u32 s48, s2, s48
    v_mul_u32_u24 v43, {8*3072}, v2
    v_lshl_add_u32 v43, v1, 4, v43
    s_mul_i32 s49, s48, {32*3072}
    s_lshl_b32 s50, s47, 8
    s_add_u32 s49, s49, s50
    s_lshr_b32 s52, s2, 2
    s_and_b32 s53, s2, 3
    s_and_b32 s54, s52, 1
    s_bfe_u32 s55, s52, 0x10001
    s_bfe_u32 s56, s52, 0x10002
    s_lshr_b32 s57, s52, 3
    s_lshl_b32 s58, s55, 5
    s_lshl_b32 s59, s54, 4
    s_add_u32 s58, s58, s59
    s_add_u32 s58, s58, s56
    s_lshl_b32 s59, s57, 8
    s_add_u32 s58, s58, s59
    s_mul_i32 s58, s58, 642
    s_mul_i32 s59, s53, 160
    s_add_u32 s60, s58, s59
    s_add_u32 s61, s60, {64*642}
    s_add_u32 s62, s60, {128*642}
    s_add_u32 s63, s60, {192*642}
    v_mul_u32_u24 v44, {2*642}, v41
    v_lshl_add_u32 v44, v40, 1, v44
    s_cmp_eq_u32 s53, 0
    s_cselect_b32 s59, 640, 0
    v_mov_b32 v45, s59
    v_cmp_eq_u32 vcc, 0, v40
    v_cndmask_b32 v45, 0, v45, vcc
    v_add_u32 v45, v45, v44
    s_waitcnt lgkmcnt(0)
    """)
    for i in range(10): k.e(f"buffer_load_dwordx4 {v(ST+4*i,4)}, v42, s[16:19], s45 offen offset:{128*i}")
    for e in range(8):
        k.e(f"buffer_load_dwordx4 {v(WL+4*e,4)}, v43, s[32:35], s49 offen")
        k.e(f"s_add_u32 s49, s49, 3072")
    def wload(task):
        for r in range(4):
            va = "v45" if task == 0 else "v44"
            k.e(f"buffer_load_ushort {v(WR+8*task+r)}, {va}, s[24:27], s{60+r} offen offset:{16*task}")
            k.e(f"buffer_load_ushort {v(WR+8*task+4+r)}, {va}, s[28:31], s{60+r} offen offset:{16*task}")
    for task in range(5): wload(task)
    k.e("s_barrier")
    k.e("s_waitcnt vmcnt(48)")
    for i in range(40):
        k.e(f"v_lshlrev_b32 {v(SL+i)}, 16, {v(ST+i)}\nv_and_b32 {v(ST+i)}, 0xffff0000, {v(ST+i)}")
    k.e("s_waitcnt vmcnt(40)")
    for task in range(5, 7): wload(task)
    k.e(f"v_pk_add_f32 v[46:47], {v(ST,2)}, {v(SL,2)}")
    k.e(f"v_pk_add_f32 v[48:49], {v(ST+2,2)}, {v(SL+2,2)}")
    for i in range(4, 40, 2):
        k.e(f"v_pk_add_f32 v[46:47], v[46:47], {v(ST+i,2)}\nv_pk_add_f32 v[48:49], v[48:49], {v(SL+i,2)}")
    red8 = lambda r: k.e(f"""
    v_add_f32_dpp {r}, {r}, {r} quad_perm:[1,0,3,2] row_mask:0xf bank_mask:0xf
    v_add_f32_dpp {r}, {r}, {r} quad_perm:[2,3,0,1] row_mask:0xf bank_mask:0xf
    v_add_f32_dpp {r}, {r}, {r} row_half_mirror row_mask:0xf bank_mask:0xf""")
    k.e("v_pk_add_f32 v[46:47], v[46:47], v[48:49]\nv_add_f32 v46, v46, v47")
    red8("v46")
    k.e(f"v_mul_f32 v46, {fhex(-1/640)}, v46\nv_mov_b32 v48, 0\nv_mov_b32 v49, 0\nv_mov_b32 v50, 0\nv_mov_b32 v51, 0")
    for i in range(0, 40, 2):
        k.e(f"v_pk_add_f32 {v(ST+i,2)}, {v(ST+i,2)}, v[46:47] op_sel_hi:[1,0]\nv_pk_add_f32 {v(SL+i,2)}, {v(SL+i,2)}, v[46:47] op_sel_hi:[1,0]")
        k.e(f"v_pk_fma_f32 v[48:49], {v(ST+i,2)}, {v(ST+i,2)}, v[48:49]\nv_pk_fma_f32 v[50:51], {v(SL+i,2)}, {v(SL+i,2)}, v[50:51]")
    k.e("v_pk_add_f32 v[48:49], v[48:49], v[50:51]\nv_add_f32 v48, v48, v49")
    red8("v48")
    k.e(f"""
    v_cvt_f64_f32 v[50:51], v48
    v_lshlrev_b32 v52, 3, v40
    s_lshl_b32 s45, s44, 6
    s_add_u32 s45, s45, {SS0}
    v_cmp_eq_u32 vcc, 0, v41
    s_and_saveexec_b64 s[50:51], vcc
    buffer_store_dwordx2 v[50:51], v52, s[8:11], s45 offen
    s_mov_b64 exec, s[50:51]
    """)
    k.e("s_waitcnt vmcnt(39)")
    for task in range(7, 10): wload(task)
    k.e(f"""
    s_waitcnt vmcnt(55)
    s_mov_b32 s50, 0x05040100
    s_mov_b32 s51, 0x07060302
    s_mul_i32 s49, s47, {8*20}
    s_add_u32 s49, s49, s48
    s_lshl_b32 s49, s49, 10
    s_add_u32 s49, s49, {W1T}
    s_cmp_ge_u32 s2, 240
    s_cbranch_scc1 K1_zero
    """)
    for t8 in range(8):
        m, hl = t8 >> 1, t8 & 1
        for pp in range(4):
            k.e(f"v_perm_b32 {v(WO+4*t8+pp)}, {v(WL+4*(2*pp+1)+m)}, {v(WL+4*(2*pp)+m)}, s{50+hl}")
        k.e(f"buffer_store_dwordx4 {v(WO+4*t8,4)}, v3, s[8:11], s49 offen\ns_add_u32 s49, s49, {20*1024}")
    k.e(f"""
    s_branch K1_wfmt
    K1_zero:
    s_sub_u32 s49, s2, 240
    s_lshl_b32 s49, s49, 10
    s_add_u32 s49, s49, {SS2}
    v_mov_b32 v224, 0
    v_mov_b32 v225, 0
    v_mov_b32 v226, 0
    v_mov_b32 v227, 0
    buffer_store_dwordx4 v[224:227], v3, s[8:11], s49 offen
    K1_wfmt:
    s_mul_i32 s49, s53, {80*8192}
    s_lshl_b32 s58, s56, 12
    s_add_u32 s49, s49, s58
    s_lshl_b32 s58, s55, 11
    s_add_u32 s49, s49, s58
    s_lshl_b32 s58, s57, 8
    s_add_u32 s49, s49, s58
    s_lshl_b32 s58, s54, 7
    s_add_u32 s49, s49, s58
    s_add_u32 s49, s49, {WP}
    v_lshlrev_b32 v46, 13, v40
    v_lshl_add_u32 v46, v41, 4, v46
    s_waitcnt vmcnt(0)
    """)
    for task in range(10):
        for r in range(4):
            k.e(f"v_lshl_or_b32 {v(WR+8*task+r)}, {v(WR+8*task+4+r)}, 16, {v(WR+8*task+r)}")
        k.e(f"buffer_store_dwordx4 {v(WR+8*task,4)}, v46, s[8:11], s49 offen\ns_add_u32 s49, s49, 65536")
    k.e(f"""
    s_cmp_lg_u32 s7, 0
    s_cbranch_scc1 K1_end
    s_mov_b32 s46, 1
    s_waitcnt vmcnt(0)
    """)
    for q in range(20): k.e(f"buffer_load_dwordx4 {v(B+4*q,4)}, v5, s[36:39], 0 offen offset:{64*q}")
    k.e("s_branch K1_xloop\nK1_end:\ns_endpgm")
    return k
```

```python
from asmlib import *
from layout import *
from k1 import srd, fgen_seeds, fgen_rest, unit_loop
import math

def column(k, P, XIN, XOUT, SS):
    XH, XL = 8, 24
    RS = 40
    WH, WL = 56, 72
    MF = 88
    C1, S1, C2, S2 = 120, 136, 152, 168
    ACC = 184
    PK = 216
    TM = 232
    AO1, AO4 = 0, 32
    mi = lambda ah, q, part: ((ah*2+q)*2+part)*4
    k.e(f"""
    s_and_b32 s4, s2, 7
    s_lshr_b32 s5, s2, 3
    s_mul_i32 s4, s4, 20
    s_add_u32 s4, s4, s5
    s_lshr_b32 s5, s4, 1
    s_and_b32 s6, s4, 1
    s_lshl_b32 s12, s5, 15
    s_lshl_b32 s13, s6, 3
    s_add_u32 s12, s12, s13
    s_add_u32 s14, s12, {XOUT}
    s_add_u32 s15, s14, 8192
    s_add_u32 s12, s12, {XIN}
    s_add_u32 s13, s12, 8192
    s_mov_b32 s16, {SS}
    s_mov_b32 s17, {SS+4096}
    s_lshl_b32 s18, s4, 14
    s_lshl_b32 s19, s3, 12
    s_add_u32 s18, s18, s19
    s_add_u32 s18, s18, {WP}
    v_lshrrev_b32 v4, 3, v1
    v_and_b32 v5, 7, v1
    s_lshl_b32 s19, s3, 3
    v_lshlrev_b32 v6, 10, v4
    v_lshl_add_u32 v6, v2, 7, v6
    v_add3_u32 v6, v6, v5, s19
    v_lshlrev_b32 {v(TM)}, 3, v6
    v_lshlrev_b32 v6, 4, v6
    v_lshl_add_u32 v6, v4, 2, v6
    v_xor_b32 v7, 0x4000, v6
    """)
    LM, LMN, AR = TM+1, TM+2, TM+3
    k.e(f"""
    s_mov_b32 s20, 0x80008000
    v_and_b32 {v(LM)}, 1, v1
    v_mul_u32_u24 {v(LM)}, 0x8000, {v(LM)}
    v_lshl_or_b32 {v(LM)}, {v(LM)}, 16, {v(LM)}
    v_xor_b32 {v(LMN)}, s20, {v(LM)}
    v_cvt_f32_u32 {v(TM+4)}, v1
    v_cvt_f32_u32 {v(TM+5)}, v2
    """)
    fi, fg = TM+4, TM+5
    BR, BI = ACC, ACC+4
    cs = ACC+8
    def matrix(step_expr, base_expr, rule, dst, acc):
        st, an = TM+6, TM+7
        k.e(step_expr.format(d=v(st), i=v(fi), g=v(fg)))
        k.e(base_expr.format(d=v(an), i=v(fi), g=v(fg), st=v(st)))
        for rr in range(4):
            k.e(f"v_cos_f32 {v(cs+2*rr)}, {v(an)}\nv_sin_f32 {v(cs+2*rr+1)}, {v(an)}")
            if rr < 3: k.e(f"v_add_f32 {v(an)}, {v(an)}, {v(st)}")
        br, bi = (BR, BI) if acc else (dst+mi(0,0,0), dst+mi(0,0,1))
        for rr in range(4):
            k.e(f"v_cvt_pk_bf16_f32 {v(br+rr)}, {v(cs+2*rr)}, {v(cs+2*rr+1)}")
            k.e(f"v_cvt_pk_bf16_f32 {v(bi+rr)}, -{v(cs+2*rr+1)}, {v(cs+2*rr)}")
        tmp = [ACC+16+x for x in range(8)]; ti = 0
        for ah in range(2):
            for q in range(2):
                for part in range(2):
                    for rr in range(4):
                        rot, csign, lsign = rule(ah, q, rr)
                        sp = part
                        if rot:
                            sp = 1 - part
                            if part == 1: csign = -csign
                        src = (br if sp == 0 else bi) + rr
                        d = dst + mi(ah, q, part) + rr
                        mask = None if (csign == 1 and not lsign) else "s20" if not lsign else v(LM) if csign == 1 else v(LMN)
                        if acc:
                            if mask is None: k.e(f"v_accvgpr_write_b32 {a(d)}, {v(src)}")
                            else:
                                t = tmp[ti % 8]; ti += 1
                                k.e(f"v_xor_b32 {v(t)}, {mask}, {v(src)}\nv_accvgpr_write_b32 {a(d)}, {v(t)}")
                        else:
                            if d == src: continue
                            if mask is None: k.e(f"v_mov_b32 {v(d)}, {v(src)}")
                            else: k.e(f"v_xor_b32 {v(d)}, {mask}, {v(src)}")
    sg = lambda rr: -1 if rr & 1 else 1
    matrix("v_mul_f32 {d}, "+fhex(1/32)+", {i}", "v_mul_f32 {d}, 4.0, {g}\nv_mul_f32 {d}, {d}, {st}",
           lambda ah, q, rr: (False, sg(rr) if ah else 1, q == 1), MF, False)
    matrix("v_add_f32 {d}, 0.5, {i}\nv_mul_f32 {d}, "+fhex(1/32)+", {d}", "v_mul_f32 {d}, 4.0, {g}\nv_mul_f32 {d}, {d}, {st}",
           lambda ah, q, rr: (q == 1, sg(rr) if ah else 1, q == 1), AO1, True)
    k.e("s_waitcnt lgkmcnt(0)")
    for q in range(2):
        for rr in range(4):
            k.e(f"buffer_load_dwordx2 {v(RS+2*(q*4+rr),2)}, {v(TM)}, s[8:11], s{16+q} offen offset:{256*rr}")
    for o in range(2):
        for q in range(2):
            for rr in range(4):
                k.e(f"buffer_load_dword {v(XH+o*8+q*4+rr)}, v{6+o}, s[8:11], s{12+q} offen offset:{512*rr}")
    for x in range(4):
        k.e(f"buffer_load_dwordx4 {v(WH+4*x,4)}, v3, s[8:11], s18 offen offset:{1024*x}")
    n2b, kf, half = TM+6, TM+7, TM+8
    k.e(f"""
    v_and_b32 {v(n2b)}, 1, v2
    v_lshl_add_u32 {v(n2b)}, {v(n2b)}, 2, s19
    v_cvt_f32_u32 {v(n2b)}, {v(n2b)}
    v_lshrrev_b32 {v(half)}, 1, v2
    v_cvt_f32_u32 {v(half)}, {v(half)}
    v_mul_f32 {v(half)}, 0.5, {v(half)}
    """)
    for par in range(2):
        for nt in range(2):
            b = (par*2+nt)*4
            k.e(f"v_add_f32 {v(kf)}, {fhex(16*nt+par*0.5)}, {v(fi)}\nv_mul_f32 {v(kf)}, {fhex(1/1024)}, {v(kf)}")
            if par: k.e(f"v_fma_f32 {v(AR)}, {v(kf)}, {v(n2b)}, {v(half)}")
            else: k.e(f"v_mul_f32 {v(AR)}, {v(kf)}, {v(n2b)}")
            for r in range(4):
                k.e(f"v_cos_f32 {v(C1+b+r)}, {v(AR)}\nv_sin_f32 {v(S1+b+r)}, {v(AR)}")
                if r < 3: k.e(f"v_add_f32 {v(AR)}, {v(AR)}, {v(kf)}")
    matrix("v_mul_f32 {d}, "+fhex(1/32)+", {i}", "v_fma_f32 {d}, {g}, 4.0, 0.5\nv_mul_f32 {d}, {d}, {st}",
           lambda ah, q, rr: (ah == 1, sg(rr) if ah else 1, q == 1), AO4, True)
    k.e(f"""
    s_and_b32 s21, s3, 1
    v_lshl_add_u32 {v(kf)}, v2, 3, s21
    v_cvt_f32_u32 {v(kf)}, {v(kf)}
    s_cmp_eq_u32 s3, 3
    s_cselect_b32 s22, 0.5, 0
    """)
    for un in range(2):
        if un: k.e(f"v_add_f32 {v(kf)}, {fhex(32.0)}, {v(kf)}")
        for nt in range(2):
            b = (un*2+nt)*4
            k.e(f"v_add_f32 {v(n2b)}, {fhex(16.0*nt)}, {v(fi)}\nv_mul_f32 {v(n2b)}, {fhex(1/2048)}, {v(n2b)}")
            k.e(f"v_fma_f32 {v(AR)}, {v(kf)}, {v(n2b)}, s22\nv_add_f32 {v(n2b)}, {v(n2b)}, {v(n2b)}")
            for r in range(4):
                k.e(f"v_cos_f32 {v(C2+b+r)}, {v(AR)}\nv_sin_f32 {v(S2+b+r)}, {v(AR)}")
                if r < 3: k.e(f"v_add_f32 {v(AR)}, {v(AR)}, {v(n2b)}")
    W1A, R1A, R1B, W2A, W2B, R2A, R2B, DCM = TM+9, TM+10, TM+11, TM+12, TM+13, TM+14, TM+15, TM+16
    t0, t1 = TM+6, TM+7
    k.e(f"""
    v_and_b32 {v(t0)}, 1, v2
    s_lshl_b32 s21, s3, 1
    v_add_u32 {v(t0)}, s21, {v(t0)}
    v_xor_b32 {v(t0)}, {v(t0)}, v5
    v_lshlrev_b32 {v(t0)}, 4, {v(t0)}
    v_lshrrev_b32 {v(t1)}, 1, v2
    v_lshl_add_u32 {v(t1)}, {v(t1)}, 6, v1
    v_lshl_add_u32 {v(W1A)}, {v(t1)}, 7, {v(t0)}
    v_xor_b32 {v(t0)}, v2, v5
    v_lshlrev_b32 {v(t0)}, 4, {v(t0)}
    v_lshl_add_u32 {v(t1)}, v1, 7, {v(t0)}
    s_lshl_b32 s21, s3, 12
    v_add_u32 {v(R1A)}, s21, {v(t1)}
    v_xor_b32 {v(R1B)}, 64, {v(R1A)}
    s_and_b32 s21, s3, 1
    s_lshl_b32 s21, s21, 13
    s_lshr_b32 s22, s3, 1
    s_lshl_b32 s22, s22, 12
    s_add_u32 s21, s21, s22
    s_add_u32 s21, s21, 16384
    v_add_u32 {v(W2A)}, s21, {v(t1)}
    v_xor_b32 {v(W2B)}, 64, {v(W2A)}
    v_lshl_add_u32 {v(t1)}, v4, 5, v5
    v_lshl_add_u32 {v(t1)}, {v(t1)}, 7, {v(t0)}
    s_lshl_b32 s21, s3, 10
    s_add_u32 s21, s21, 16384
    v_add_u32 {v(R2A)}, s21, {v(t1)}
    v_xor_b32 {v(R2B)}, 64, {v(R2A)}
    v_cmp_eq_u32 vcc, 0, v4
    v_mov_b32 {v(DCM)}, 0xffff
    v_cndmask_b32 {v(DCM)}, -1, {v(DCM)}, vcc
    s_mov_b32 s21, {fhex(2.0**22/640)}
    v_mov_b32 {v(t0)}, {fhex(1e-5*2.0**22)}
    """)
    k.e("s_waitcnt vmcnt(20)")
    for x in range(8): k.e(f"v_cvt_f32_f64 {v(PK+x)}, {v(RS+2*x,2)}")
    for x in range(8): k.e(f"v_fma_f32 {v(PK+x)}, {v(PK+x)}, s21, {v(t0)}")
    for x in range(8): k.e(f"v_rsq_f32 {v(RS+x)}, {v(PK+x)}")
    for x in range(8): k.e(f"v_mov_b32_dpp {v(RS+8+x)}, {v(RS+x)} row_ror:8 row_mask:0xf bank_mask:0xf")
    k.e("s_waitcnt vmcnt(12)")
    for x in range(8): k.e(f"v_lshlrev_b32 {v(XL+x)}, 16, {v(XH+x)}\nv_and_b32 {v(XH+x)}, 0xffff0000, {v(XH+x)}")
    for x in range(0, 8, 2):
        k.e(f"v_pk_mul_f32 {v(ACC+x,2)}, {v(XL+x,2)}, {v(RS+x,2)}\nv_pk_mul_f32 {v(ACC+8+x,2)}, {v(XH+x,2)}, {v(RS+x,2)}")
    k.e("s_waitcnt vmcnt(4)")
    for x in range(8, 16): k.e(f"v_lshlrev_b32 {v(XL+x)}, 16, {v(XH+x)}\nv_and_b32 {v(XH+x)}, 0xffff0000, {v(XH+x)}")
    for x in range(0, 8, 2):
        k.e(f"""v_pk_fma_f32 {v(ACC+16+x,2)}, {v(XL+8+x,2)}, {v(RS+8+x,2)}, {v(ACC+x,2)}
        v_pk_fma_f32 {v(ACC+24+x,2)}, {v(XH+8+x,2)}, {v(RS+8+x,2)}, {v(ACC+8+x,2)}
        v_pk_fma_f32 {v(ACC+x,2)}, {v(XL+8+x,2)}, {v(RS+8+x,2)}, {v(ACC+x,2)} neg_lo:[1,0,0] neg_hi:[1,0,0]
        v_pk_fma_f32 {v(ACC+8+x,2)}, {v(XH+8+x,2)}, {v(RS+8+x,2)}, {v(ACC+8+x,2)} neg_lo:[1,0,0] neg_hi:[1,0,0]""")
    for x in range(8):
        k.e(f"v_cvt_pk_bf16_f32 {v(PK+x)}, {v(ACC+16+x)}, {v(ACC+24+x)}")
    for x in range(8):
        k.e(f"v_cvt_pk_bf16_f32 {v(PK+8+x)}, {v(ACC+x)}, {v(ACC+8+x)}")
    k.e(f"s_cmp_lg_u32 s4, 0\ns_cbranch_scc1 {P}_nodc1")
    for x in range(16): k.e(f"v_and_b32 {v(PK+x)}, {v(DCM)}, {v(PK+x)}")
    k.e(f"{P}_nodc1:\ns_nop 1")
    def stage(mat, data_is_A):
        for grp in range(2):
            for ah in range(2):
                for q in range(2):
                    for part in range(2):
                        C = v(ACC+((grp*2+ah)*2+part)*4, 4); Dd = v(PK+grp*8+q*4, 4); M = mat(grp, ah, q, part)
                        A_, B_ = (Dd, M) if data_is_A else (M, Dd)
                        k.e(f"v_mfma_f32_16x16x32_bf16 {C}, {A_}, {B_}, {C if q else 0}")
    def cmul(b, C, S, conj_w, swap, after):
        re, im = ACC+b*8, ACC+b*8+4
        T0, T1 = RS+ (b % 2)*8, RS+(b % 2)*8+4
        ng = " neg_lo:[1,0,0] neg_hi:[1,0,0]"
        for r in (0, 2):
            k.e(f"v_pk_mul_f32 {v(T0+r,2)}, {v(re+r,2)}, {v(C+b*4+r,2)}\nv_pk_mul_f32 {v(T1+r,2)}, {v(im+r,2)}, {v(C+b*4+r,2)}")
        for r in (0, 2):
            k.e(f"v_pk_fma_f32 {v(T0+r,2)}, {v(im+r,2)}, {v(S+b*4+r,2)}, {v(T0+r,2)}{ng if conj_w else ''}")
            k.e(f"v_pk_fma_f32 {v(T1+r,2)}, {v(re+r,2)}, {v(S+b*4+r,2)}, {v(T1+r,2)}{'' if conj_w else ng}")
        for r in range(4):
            x, y = (T1+r, T0+r) if swap else (T0+r, T1+r)
            k.e(f"v_cvt_pk_bf16_f32 {v(PK+b*4+r)}, {v(x)}, {v(y)}")
        if after: k.e(after)
    mF = lambda grp, ah, q, part: v(MF+mi(ah, q, part), 4)
    stage(lambda grp, ah, q, part: mF(grp, ah, q, part) if grp == 0 else a(AO1+mi(ah, q, part), 4), True)
    for b in range(4):
        cmul(b, C1, S1, False, False, f"ds_write_b128 {v(W1A)}, {v(PK+4*b,4)} offset:{(b>>1)*4096+(b&1)*2048}")
    k.e("s_waitcnt vmcnt(0)")
    for x in range(8): k.e(f"v_lshlrev_b32 {v(WL+x)}, 16, {v(WH+x)}\nv_and_b32 {v(WH+x)}, 0xffff0000, {v(WH+x)}")
    k.e("s_waitcnt lgkmcnt(0)\ns_barrier")
    for un in range(2):
        k.e(f"ds_read_b128 {v(PK+un*8,4)}, {v(R1A)} offset:{un*2048}\nds_read_b128 {v(PK+un*8+4,4)}, {v(R1B)} offset:{un*2048}")
    for x in range(8, 16): k.e(f"v_lshlrev_b32 {v(WL+x)}, 16, {v(WH+x)}\nv_and_b32 {v(WH+x)}, 0xffff0000, {v(WH+x)}")
    k.e("s_waitcnt lgkmcnt(0)")
    stage(mF, False)
    for b in range(4): cmul(b, WL, WH, True, True, None)
    stage(mF, True)
    for b in range(4):
        cmul(b, C2, S2, False, False, f"ds_write_b128 {v(W2A if (b>>1)==0 else W2B)}, {v(PK+4*b,4)} offset:{(b&1)*2048}")
    k.e("s_waitcnt lgkmcnt(0)\ns_barrier")
    for par in range(2):
        k.e(f"ds_read_b128 {v(PK+par*8,4)}, {v(R2A)} offset:{par*8192}\nds_read_b128 {v(PK+par*8+4,4)}, {v(R2B)} offset:{par*8192}")
    k.e("s_waitcnt lgkmcnt(0)")
    stage(lambda grp, ah, q, part: mF(grp, ah, q, part) if grp == 0 else a(AO4+mi(ah, q, part), 4), False)
    k.e(f"s_cmp_lg_u32 s4, 0\ns_cbranch_scc1 {P}_nodc2\nv_ashrrev_i32 {v(DCM)}, 31, {v(DCM)}")
    for b in range(4):
        for r in range(4): k.e(f"v_and_b32 {v(ACC+b*8+r)}, {v(DCM)}, {v(ACC+b*8+r)}")
    k.e(f"{P}_nodc2:\ns_nop 7")
    ng = " neg_lo:[0,1] neg_hi:[0,1]"
    for mt in range(2):
        E, O = ACC+mt*8, ACC+16+mt*8
        for r in (0, 2):
            for (X, off) in ((XL, 4), (XH, 0)):
                k.e(f"v_pk_add_f32 {v(X+mt*4+r,2)}, {v(X+mt*4+r,2)}, {v(E+off+r,2)}\nv_pk_add_f32 {v(X+8+mt*4+r,2)}, {v(X+8+mt*4+r,2)}, {v(E+off+r,2)}")
        for r in (0, 2):
            for (X, off) in ((XL, 4), (XH, 0)):
                k.e(f"v_pk_add_f32 {v(X+mt*4+r,2)}, {v(X+mt*4+r,2)}, {v(O+off+r,2)}\nv_pk_add_f32 {v(X+8+mt*4+r,2)}, {v(X+8+mt*4+r,2)}, {v(O+off+r,2)}{ng}")
        for o in range(2):
            for r in range(4):
                x = o*8+mt*4+r
                k.e(f"v_cvt_pk_bf16_f32 {v(PK+x)}, {v(XL+x)}, {v(XH+x)}")
                k.e(f"buffer_store_dword {v(PK+x)}, v{6+o}, s[8:11], s{14+mt} offen offset:{512*r}")
    k.e("s_endpgm")

def head(k, P):
    k.e(f"""
    s_cmp_ge_u32 s2, 256
    s_cbranch_scc1 {P}_end
    s_load_dwordx2 s[8:9], s[0:1], 80
    s_load_dwordx2 s[24:25], s[0:1], 48
    v_lshrrev_b32 v1, 6, v0
    v_and_b32 v0, 63, v0
    v_readfirstlane_b32 s3, v1
    v_and_b32 v1, 15, v0
    v_lshrrev_b32 v2, 4, v0
    v_lshlrev_b32 v3, 4, v0
    """)
    srd(k, 8, WSBYTES); srd(k, 24, 1536*640*2)
    k.e(f"s_cmp_ge_u32 s2, 160\ns_cbranch_scc1 {P}_side")

def build_k2():
    k = Kern("k2_kernel", 256, 256, 102400, 256, 64)
    head(k, "K2")
    column(k, "K2", XH0, XH1, SS0)
    B, ACC, LB, T = 8, 168, 208, 208
    k.e(f"""
    K2_side:
    s_sub_u32 s4, s2, 160
    s_and_b32 s5, s4, 7
    s_lshr_b32 s4, s4, 3
    s_mul_i32 s5, s5, 12
    s_add_u32 s4, s4, s5
    s_lshr_b32 s7, s4, 3
    s_and_b32 s6, s4, 7
    v_add_u32 v4, 51200, v3
    s_lshl_b32 s12, s7, 2
    s_add_u32 s12, s12, s3
    s_mul_i32 s12, s12, {2*20*1024}
    s_add_u32 s12, s12, {W1T}
    s_add_u32 s13, s12, {20*1024}
    """)
    fgen_seeds(k, 3, 6, 1, 2, T)
    k.e("s_waitcnt lgkmcnt(0)")
    for q in range(20):
        for u in range(2):
            k.e(f"buffer_load_dwordx4 {v(B+(q*2+u)*4,4)}, v3, s[8:11], s{12+u} offen offset:{1024*(q%4)}")
        if q % 4 == 3: k.e("s_add_u32 s12, s12, 4096\ns_add_u32 s13, s13, 4096")
    fgen_rest(k, 3, 3, T)
    k.e("s_cmp_lg_u32 s3, 0\ns_cbranch_scc1 K2_nof\ns_mov_b32 s14, 4")
    fgen_seeds(k, 14, 6, 1, 2, T)
    fgen_rest(k, 14, 3, T)
    k.e("K2_nof:\ns_waitcnt lgkmcnt(0)\ns_barrier")
    unit_loop(k, 2, B, ACC, LB, 3, 4, False, 0)
    k.e(f"""
    v_lshrrev_b32 v8, 2, v1
    s_lshl_b32 s12, s7, 2
    v_add_u32 v8, s12, v8
    v_mul_u32_u24 v9, 43, v8
    v_lshrrev_b32 v9, 7, v9
    v_mul_u32_u24 v10, 3, v9
    v_sub_u32 v8, v8, v10
    v_mul_u32_u24 v9, 122880, v9
    v_lshl_add_u32 v9, v8, 10, v9
    v_and_b32 v8, 1, v1
    v_lshl_add_u32 v9, v8, 8, v9
    v_bfe_u32 v8, v1, 1, 1
    v_lshl_add_u32 v9, v8, 6, v9
    v_lshrrev_b32 v8, 1, v2
    v_and_b32 v10, 1, v2
    v_mul_u32_u24 v6, 3072, v8
    v_lshl_add_u32 v6, v10, 9, v6
    v_add_u32 v6, v6, v9
    v_lshl_add_u32 v7, v8, 9, v9
    v_lshl_add_u32 v7, v10, 3, v7
    s_mul_i32 s12, s6, {5*3072}
    s_lshr_b32 s13, s3, 1
    s_lshl_b32 s13, s13, 7
    s_add_u32 s12, s12, s13
    s_and_b32 s13, s3, 1
    s_lshl_b32 s13, s13, 5
    s_add_u32 s12, s12, s13
    s_add_u32 s12, s12, {W1P}
    s_add_u32 s13, s12, {2*3072}
    s_add_u32 s14, s12, {4*3072}
    """)
    for u in range(2):
        o = 12+u*12
        for p in range(10): k.e(f"v_cvt_pk_bf16_f32 {v(o+p)}, {v(ACC+u*20+2*p)}, {v(ACC+u*20+2*p+1)}")
        k.e(f"""buffer_store_dwordx4 {v(o,4)}, v6, s[8:11], s12 offen offset:{16*u}
        buffer_store_dwordx4 {v(o+4,4)}, v6, s[8:11], s13 offen offset:{16*u}
        buffer_store_dwordx2 {v(o+8,2)}, v7, s[8:11], s14 offen offset:{16*u}""")
    k.e("K2_end:\ns_endpgm")
    return k

def build_k5():
    k = Kern("k5_kernel", 256, 256, 102400, 256, 64)
    head(k, "K5")
    column(k, "K5", XH2, XH3, SS2)
    WL, WO = 8, 40
    k.e(f"""
    K5_side:
    s_sub_u32 s4, s2, 160
    s_lshl_b32 s4, s4, 2
    s_add_u32 s4, s4, s3
    s_mul_i32 s5, s4, 13108
    s_lshr_b32 s5, s5, 16
    s_mul_i32 s6, s5, 5
    s_sub_u32 s6, s4, s6
    v_mul_u32_u24 v4, {8*1280}, v2
    v_lshl_add_u32 v4, v1, 4, v4
    s_mul_i32 s12, s5, {32*1280}
    s_lshl_b32 s13, s6, 8
    s_add_u32 s12, s12, s13
    s_waitcnt lgkmcnt(0)
    """)
    for e in range(8):
        k.e(f"buffer_load_dwordx4 {v(WL+4*e,4)}, v4, s[24:27], s12 offen\ns_add_u32 s12, s12, 1280")
    k.e(f"""
    s_mov_b32 s14, s4
    s_mov_b32 s20, {fhex(1/640)}
    s_mov_b32 s21, {fhex(-640.0)}
    s_mov_b32 s22, {fhex(math.sqrt(2/640))}
    K5_floop:
    s_mul_i32 s15, s14, 5243
    s_lshr_b32 s15, s15, 19
    s_mul_i32 s16, s15, 100
    s_sub_u32 s16, s14, s16
    s_mul_i32 s17, s16, 13108
    s_lshr_b32 s17, s17, 16
    s_mul_i32 s18, s17, 5
    s_sub_u32 s18, s16, s18
    s_lshr_b32 s40, s18, 1
    s_lshl_b32 s40, s40, 5
    s_and_b32 s41, s18, 1
    s_lshl_b32 s41, s41, 2
    s_add_u32 s40, s40, s41
    s_mul_i32 s41, s15, 80
    s_add_u32 s40, s40, s41
    s_cmp_eq_u32 s18, 4
    s_cselect_b32 s41, 2, 3
    v_lshrrev_b32 v80, 2, v1
    v_lshlrev_b32 v80, s41, v80
    v_and_b32 v81, 3, v1
    v_add3_u32 v80, v80, v81, s40
    s_lshl_b32 s41, s17, 4
    v_lshl_add_u32 v81, v2, 2, s41
    v_cmp_eq_u32 vcc, 0, v81
    v_mul_u32_u24 v82, v80, v81
    v_cvt_f32_u32 v82, v82
    v_cvt_f32_u32 v83, v80
    """)
    for m in range(4):
        k.e(f"""
        v_mul_f32 v84, s20, v82
        v_floor_f32 v84, v84
        v_fma_f32 v84, v84, s21, v82
        v_mul_f32 v84, s20, v84
        v_cos_f32 v85, v84
        v_sin_f32 v86, v84
        v_add_f32 v82, v82, v83
        v_mul_f32 v85, s22, v85
        v_mul_f32 v86, s22, v86
        v_cvt_pk_bf16_f32 {v(88+m)}, v85, -v86
        """)
    k.e(f"""
    v_mov_b32 v85, {fhex(math.sqrt(1/640))}
    v_cvt_pk_bf16_f32 v85, v85, v85
    v_and_b32 v86, 1, v80
    v_lshlrev_b32 v86, 15, v86
    v_xor_b32 v85, v85, v86
    v_cndmask_b32 v88, v88, v85, vcc
    s_mul_i32 s15, s15, {68*5120}
    s_lshl_b32 s16, s16, 10
    s_add_u32 s15, s15, s16
    s_add_u32 s15, s15, {W2F+48*5120}
    buffer_store_dwordx4 v[88:91], v3, s[8:11], s15 offen
    s_add_u32 s14, s14, 384
    s_cmp_lt_u32 s14, 800
    s_cbranch_scc1 K5_floop
    s_cmp_ge_u32 s4, 240
    s_cbranch_scc1 K5_end
    s_lshl_b32 s13, s6, 4
    v_add_u32 v80, s13, v1
    v_mul_u32_u24 v81, 205, v80
    v_lshrrev_b32 v81, 11, v81
    v_mul_u32_u24 v82, 10, v81
    v_sub_u32 v82, v80, v82
    v_mul_u32_u24 v81, {68*5120}, v81
    v_lshl_add_u32 v81, v2, 8, v81
    v_lshrrev_b32 v83, 2, v82
    v_lshl_add_u32 v81, v83, 11, v81
    v_and_b32 v83, 3, v82
    v_cmp_gt_u32 vcc, 8, v82
    v_cndmask_b32 v84, 7, 6, vcc
    v_lshlrev_b32 v83, v84, v83
    v_add_u32 v81, v81, v83
    v_mov_b32 v84, 1024
    v_cndmask_b32 v84, 64, v84, vcc
    v_add_u32 v82, v81, v84
    s_mul_i32 s12, s5, 5120
    s_add_u32 s12, s12, {W2F}
    s_mov_b32 s50, 0x05040100
    s_mov_b32 s51, 0x07060302
    s_waitcnt vmcnt(0)
    """)
    for t8 in range(8):
        m, hl = t8 >> 1, t8 & 1
        for pp in range(4):
            k.e(f"v_perm_b32 {v(WO+4*t8+pp)}, {v(WL+4*(2*pp+1)+m)}, {v(WL+4*(2*pp)+m)}, s{50+hl}")
        k.e(f"buffer_store_dwordx4 {v(WO+4*t8,4)}, v{81+(t8>>2)}, s[8:11], s12 offen offset:{16*(t8&3)}")
    k.e("K5_end:\ns_endpgm")
    return k
```

```python
from asmlib import *
from layout import *
from k1 import srd
import math

class VM:
    def __init__(self, k): self.k = k; self.n = 0; self.tag = {}
    def op(self, text, tag=None):
        self.k.e(text); self.n += 1
        if tag is not None: self.tag[tag] = self.n
    def wait(self, tag):
        c = self.n - self.tag[tag]
        assert c <= 63, c
        self.k.e(f"s_waitcnt vmcnt({c})")

def build_gemm1(name, P, XIN, HOUT, SC=""):
    k = Kern(name, 256, 256, 122880, 256)
    X, ACC, LB, SA = 16, 176, 224, 248
    k.e(f"""
    s_cmp_ge_u32 s2, 256
    s_cbranch_scc1 {P}_end
    s_load_dwordx2 s[8:9], s[0:1], 80
    s_load_dwordx2 s[12:13], s[0:1], 40
    v_lshrrev_b32 v1, 6, v0
    v_and_b32 v0, 63, v0
    v_readfirstlane_b32 s3, v1
    v_and_b32 v1, 31, v0
    v_lshrrev_b32 v2, 5, v0
    v_lshlrev_b32 v3, 4, v0
    v_add_u32 v4, 61440, v3
    v_lshlrev_b32 v5, 15, v2
    v_lshl_add_u32 v5, v1, 4, v5
    v_lshlrev_b32 v6, 5, v2
    v_lshrrev_b32 v7, 4, v1
    v_mul_u32_u24 v7, 49152, v7
    v_and_b32 v8, 15, v1
    v_lshl_add_u32 v7, v8, 4, v7
    v_lshl_add_u32 v7, v2, 9, v7
    v_cmp_eq_u32 vcc, 0, v2
    v_mov_b32 v8, 0xffff
    v_cndmask_b32 v8, -1, v8, vcc
    s_and_b32 s4, s2, 7
    s_lshr_b32 s5, s2, 3
    s_lshr_b32 s6, s4, 1
    s_lshl_b32 s6, s6, 2
    s_lshr_b32 s7, s5, 3
    s_add_u32 s6, s6, s7
    s_and_b32 s7, s4, 1
    s_lshl_b32 s7, s7, 3
    s_and_b32 s5, s5, 7
    s_add_u32 s7, s7, s5
    s_lshl_b32 s16, s6, 2
    s_add_u32 s16, s16, s3
    s_mul_i32 s20, s16, {2*49152}
    s_lshl_b32 s16, s16, 9
    s_add_u32 s16, s16, {XIN}
    s_mul_i32 s17, s3, 3072
    s_mul_i32 s18, s7, 122880
    s_add_u32 s18, s18, s17
    s_add_u32 s18, s18, {W1P}
    s_mul_i32 s19, s7, 192
    s_mul_i32 s21, s7, 3072
    s_add_u32 s20, s20, s21
    s_add_u32 s20, s20, {HOUT}
    """)
    srd(k, 8, WSBYTES); srd(k, 12, 3072)
    vm = VM(k)
    pend = []
    def group_loads(g):
        L = []
        def dma(x):
            def f():
                if x == 0: k.e("s_mov_b32 m0, s17")
                vm.op(f"buffer_load_dwordx4 v3, s[8:11], s18 offen offset:{1024*x} lds")
                if x == 2: k.e("s_add_u32 s17, s17, 12288\ns_add_u32 s18, s18, 12288")
            return f
        def xl(q, last):
            def f():
                vm.op(f"buffer_load_dwordx4 {v(X+4*q,4)}, v5, s[8:11], s16 offen", ("g", g) if last else None)
                k.e("s_add_u32 s16, s16, 65536")
            return f
        return [dma(0), xl(4*g, False), dma(1), xl(4*g+1, False), dma(2), xl(4*g+2, False), xl(4*g+3, True)]
    def b1l(i):
        def f(): vm.op(f"buffer_load_dwordx4 {v(X+4*i,4)}, v6, s[12:15], s19 offen offset:{(i>>1)*64+(i&1)*16}", "b1")
        return f
    k.e("s_waitcnt lgkmcnt(0)")
    PRE = 3
    for g in range(PRE):
        for f in group_loads(g): f()
    def rd(q):
        for t in range(3):
            off = (q*3+t)*1024
            base, off = (3, off) if off < 61440 else (4, off-61440)
            k.e(f"ds_read_b128 {v(LB+(q%2)*12+t*4,4)}, {v(base)} offset:{off}")
    vm.wait(("g", 0)); k.e("s_barrier"); rd(0)
    k.e(f"v_and_b32 {v(X)}, v8, {v(X)}")
    for q in range(40):
        if q % 4 == 0:
            g = q//4 + PRE
            if g < 10: pend += group_loads(g)
            elif g == 10: pend += [b1l(i) for i in range(6)]
        if q < 39:
            if (q+1) % 4 == 0:
                vm.wait(("g", (q+1)//4)); k.e("s_barrier")
            rd(q+1)
        nl = 2 if q % 4 != 3 else 1
        for t in range(3):
            k.e(f"s_waitcnt lgkmcnt({(3 if q<39 else 0)+2-t})")
            C = v(ACC+16*t, 16)
            k.e(f"v_mfma_f32_32x32x16_bf16 {C}, {v(LB+(q%2)*12+t*4,4)}, {v(X+4*q,4)}, {C if q else 0}")
            if t < nl and pend: pend.pop(0)()
        for hh in range(2):
            C = v(SA+4*hh, 4); Aop = v(X+4*q+2*hh, 2)
            k.e(f"v_mfma_f32_4x4x4_16b_bf16 {C}, {Aop}, {Aop}, {C if q else 0}")
    assert not pend
    K1c = -2*math.sqrt(2/math.pi)*math.log2(math.e); K3c = K1c*0.044715
    BL, BH = X+24, X+48
    BU = X+24
    vm.wait("b1")
    for i in range(24):
        k.e(f"v_lshlrev_b32 {v(BU+2*i)}, 16, {v(X+i)}\nv_and_b32 {v(BU+2*i+1)}, 0xffff0000, {v(X+i)}")
    k.e(f"""
    v_pk_add_f32 {v(SA,2)}, {v(SA,2)}, {v(SA+4,2)}
    v_pk_add_f32 {v(SA+2,2)}, {v(SA+2,2)}, {v(SA+6,2)}
    v_and_b32 v9, 2, v0
    v_cmp_ne_u32 vcc, 0, v9
    v_and_b32 v9, 1, v0
    v_cndmask_b32 {v(SA)}, {v(SA)}, {v(SA+2)}, vcc
    v_cndmask_b32 {v(SA+1)}, {v(SA+1)}, {v(SA+3)}, vcc
    v_cmp_ne_u32 vcc, 0, v9
    s_mov_b32 s22, {fhex(1/640)}
    v_mov_b32 v9, {fhex(1e-5)}
    v_cndmask_b32 v10, {v(SA)}, {v(SA+1)}, vcc
    v_mov_b32 v11, v10
    v_permlane32_swap_b32 v10, v11
    v_add_f32 v10, v10, v11
    v_fma_f32 v10, v10, s22, v9
    v_rsq_f32 v10, v10
    s_mov_b32 s22, {fhex(K3c)}
    v_mov_b32 v12, {fhex(K1c)}
    """)
    T1, T2, PK = X+72, X+88, X+104
    for t in range(3):
        A = ACC+16*t
        for e in range(0, 16, 2): k.e(f"v_pk_fma_f32 {v(A+e,2)}, {v(A+e,2)}, v[10:11], {v(BU+16*t+e,2)} op_sel_hi:[1,0,1]")
        for e in range(0, 16, 2): k.e(f"v_pk_mul_f32 {v(T1+e,2)}, {v(A+e,2)}, {v(A+e,2)}")
        for e in range(0, 16, 2): k.e(f"v_pk_fma_f32 {v(T1+e,2)}, {v(T1+e,2)}, s[22:23], v[12:13] op_sel_hi:[1,0,0]")
        for e in range(0, 16, 2): k.e(f"v_pk_mul_f32 {v(T1+e,2)}, {v(T1+e,2)}, {v(A+e,2)}")
        for e in range(16): k.e(f"v_exp_f32 {v(T1+e)}, {v(T1+e)}")
        for e in range(0, 16, 2): k.e(f"v_pk_add_f32 {v(T1+e,2)}, {v(T1+e,2)}, 1.0 op_sel_hi:[1,0]")
        for e in range(16): k.e(f"v_rcp_f32 {v(T1+e)}, {v(T1+e)}")
        for e in range(0, 16, 2): k.e(f"v_pk_mul_f32 {v(T1+e,2)}, {v(T1+e,2)}, {v(A+e,2)}")
        for e in range(8): k.e(f"v_cvt_pk_bf16_f32 {v(PK+8*t+e)}, {v(T1+2*e)}, {v(T1+2*e+1)}")
        for hf in range(2): k.e(f"buffer_store_dwordx4 {v(PK+8*t+4*hf,4)}, v7, s[8:11], s20 offen offset:{1024*t+256*hf} {SC}")
    k.e(f"{P}_end:\ns_endpgm")
    return k

def build_gemm2(name, P, HIN, XRES, XOUT, final, SC=""):
    k = Kern(name, 256, 256, 61440, 256)
    RD = 4
    RG, ACC = 16, 160
    NS = 17 if final else 12
    KS = 68 if final else 48
    WT = W2F if final else W2P
    k.e(f"""
    s_cmp_ge_u32 s2, 256
    s_cbranch_scc1 {P}_end
    s_load_dwordx2 s[8:9], s[0:1], 80
    """)
    if final: k.e("s_load_dwordx2 s[12:13], s[0:1], 56\ns_load_dwordx2 s[16:17], s[0:1], 64")
    k.e(f"""
    v_lshrrev_b32 v1, 6, v0
    v_and_b32 v0, 63, v0
    v_readfirstlane_b32 s3, v1
    v_and_b32 v1, 15, v0
    v_lshrrev_b32 v2, 4, v0
    v_lshlrev_b32 v3, 4, v0
    v_add_u32 v4, 4096, v3
    v_lshlrev_b32 v5, 15, v2
    v_lshl_add_u32 v5, v1, 4, v5
    s_and_b32 s4, s2, 7
    s_lshr_b32 s5, s2, 3
    s_lshr_b32 s6, s4, 1
    s_lshl_b32 s6, s6, 3
    s_lshr_b32 s7, s5, 2
    s_add_u32 s6, s6, s7
    s_and_b32 s7, s4, 1
    s_lshl_b32 s7, s7, 2
    s_and_b32 s5, s5, 3
    s_add_u32 s7, s7, s5
    s_mul_i32 s20, s7, {KS*5120}
    s_add_u32 s20, s20, {WT}
    s_mul_i32 s21, s3, {5*5120}
    s_add_u32 s21, s21, s20
    s_add_u32 s21, s21, {48*5120}
    s_mul_i32 s22, s3, {12*5120}
    s_add_u32 s20, s20, s22
    s_mul_i32 s22, s3, 12288
    s_mul_i32 s23, s3, {20*32768}
    """)
    for u in range(4):
        k.e(f"""
        s_add_u32 s32, s3, {u}
        s_and_b32 s32, s32, 3
        s_mul_i32 s{36+u}, s32, 15360
        s_lshl_b32 s33, s6, 2
        s_add_u32 s32, s32, s33
        s_mul_i32 s{24+u}, s32, 49152
        s_add_u32 s{24+u}, s{24+u}, s22
        s_add_u32 s{24+u}, s{24+u}, {HIN}
        s_lshl_b32 s{28+u}, s32, 8
        """)
        if u == 0: k.e("s_mov_b32 s34, s32")
        if final: k.e(f"s_add_u32 s{28+u}, s{28+u}, s23\ns_add_u32 s{28+u}, s{28+u}, {XRES}")
    srd(k, 8, WSBYTES)
    if final: srd(k, 12, 1280); srd(k, 16, XSZ)
    vm = VM(k)
    def step_loads(it):
        R = RG+(it % RD)*36
        L = []
        def al(t):
            def f():
                sa = 20 if it < 12 else 21
                if t < 4: vm.op(f"buffer_load_dwordx4 {v(R+4*t,4)}, v3, s[8:11], s{sa} offen offset:{1024*t}")
                else:
                    vm.op(f"buffer_load_dwordx4 {v(R+4*t,4)}, v4, s[8:11], s{sa} offen", ("s", it))
                    k.e(f"s_add_u32 s{sa}, s{sa}, 5120")
            return f
        def bl(u):
            def f():
                if it < 12:
                    vm.op(f"buffer_load_dwordx4 {v(R+20+4*u,4)}, v3, s[8:11], s{24+u} offen offset:{1024*(it%4)}")
                    if it % 4 == 3: k.e(f"s_add_u32 s{24+u}, s{24+u}, 4096")
                else:
                    vm.op(f"buffer_load_dwordx4 {v(R+20+4*u,4)}, v5, s[8:11], s{28+u} offen")
                    k.e(f"s_add_u32 s{28+u}, s{28+u}, {4*32768}")
            return f
        return [bl(0), al(0), bl(1), al(1), bl(2), al(2), bl(3), al(3), al(4)]
    EX = RG+(NS % RD)*36
    def extra_loads():
        L = []
        if not final:
            for t in range(5):
                L.append(lambda t=t: vm.op(f"buffer_load_dwordx4 {v(EX+4*t,4)}, v6, s[8:11], s40 offen offset:{64*t}"))
            L.append(lambda: vm.op(f"buffer_load_dwordx4 {v(EX+20,4)}, v5, s[8:11], s41 offen"))
            L.append(lambda: vm.op(f"buffer_load_dwordx4 {v(EX+24,4)}, v5, s[8:11], s42 offen"))
            L.append(lambda: vm.op(f"buffer_load_dwordx2 {v(EX+28,2)}, v7, s[8:11], s43 offen", "ex"))
        else:
            L.append(lambda: vm.op(f"buffer_load_dwordx4 {v(EX+20,4)}, v6, s[12:15], s40 offen"))
            L.append(lambda: vm.op(f"buffer_load_dwordx4 {v(EX+24,4)}, v6, s[12:15], s40 offen offset:64"))
            L.append(lambda: vm.op(f"buffer_load_dwordx2 {v(EX+28,2)}, v7, s[12:15], s40 offen offset:128", "ex"))
        return L
    k.e("s_waitcnt lgkmcnt(0)")
    for it in range(RD-1):
        for f in step_loads(it): f()
    if not final:
        k.e(f"""
        v_lshlrev_b32 v6, 4, v2
        v_lshrrev_b32 v7, 1, v2
        v_lshlrev_b32 v7, 15, v7
        v_lshl_add_u32 v7, v1, 4, v7
        v_and_b32 v8, 1, v2
        v_lshl_add_u32 v7, v8, 3, v7
        s_mul_i32 s40, s7, 320
        s_add_u32 s40, s40, {B2P}
        s_mul_i32 s41, s7, {10*32768}
        s_add_u32 s41, s41, s28
        s_add_u32 s44, s41, {XOUT}
        s_add_u32 s45, s44, {4*32768}
        s_add_u32 s46, s44, {8*32768}
        s_add_u32 s41, s41, {XRES}
        s_add_u32 s42, s41, {4*32768}
        s_add_u32 s43, s41, {8*32768}
        s_lshl_b32 s47, s34, 7
        s_add_u32 s47, s47, {SS2}
        v_lshlrev_b32 v9, 3, v1
        v_or_b32 v8, s7, v2
        v_cmp_eq_u32 vcc, 0, v8
        v_cndmask_b32 v8, -1, 0, vcc
        """)
    else:
        k.e(f"""
        v_lshlrev_b32 v6, 4, v2
        v_lshlrev_b32 v7, 3, v2
        s_mul_i32 s40, s7, 160
        v_mul_u32_u24 v8, 1280, v1
        v_add_u32 v9, v8, v7
        v_add_u32 v8, v8, v6
        s_mul_i32 s44, s34, {16*1280}
        s_add_u32 s44, s44, s40
        """)
    for u in range(4): k.e(f"v_add_u32 {v(10+u)}, s{36+u}, v3")
    for it in range(NS):
        nx = it+RD-1
        pend = step_loads(nx) if nx < NS else extra_loads() if nx == NS else []
        vm.wait(("s", it))
        R = RG+(it % RD)*36
        n = 0
        order = [(t, u) for u in (1, 2, 3, 0) for t in range(5)]
        for (t, u) in order:
            C = v(ACC+(u*5+t)*4, 4)
            k.e(f"v_mfma_f32_16x16x32_bf16 {C}, {v(R+4*t,4)}, {v(R+20+4*u,4)}, {C if it else 0}")
            n += 1
            if n % 2 == 0 and pend: pend.pop(0)()
            if it == NS-1 and n >= 10 and n % 5 == 0:
                uu = order[n-10][1]
                for tt in range(5):
                    k.e(f"ds_write_b128 {v(10+uu)}, {v(ACC+(uu*5+tt)*4,4)} offset:{((uu-1)*5+tt)*1024}")
        assert not pend
    k.e("s_waitcnt lgkmcnt(0)\ns_barrier")
    RB = ACC+20
    for x in range(15): k.e(f"ds_read_b128 {v(RB+4*x,4)}, v10 offset:{x*1024}")
    vm.wait("ex")
    UN = RG+((NS+1) % RD)*36
    for i in range(10):
        k.e(f"v_lshlrev_b32 {v(UN+2*i)}, 16, {v(EX+20+i)}\nv_and_b32 {v(UN+2*i+1)}, 0xffff0000, {v(EX+20+i)}")
    for e in range(0, 20, 2): k.e(f"v_pk_add_f32 {v(ACC+e,2)}, {v(ACC+e,2)}, {v(UN+e,2)}")
    if not final:
        for e in range(0, 20, 2): k.e(f"v_pk_add_f32 {v(ACC+e,2)}, {v(ACC+e,2)}, {v(EX+e,2)}")
    for j in range(3):
        k.e(f"s_waitcnt lgkmcnt({10-5*j})")
        for e in range(0, 20, 2): k.e(f"v_pk_add_f32 {v(ACC+e,2)}, {v(ACC+e,2)}, {v(RB+20*j+e,2)}")
    PK = UN+20
    for p in range(10): k.e(f"v_cvt_pk_bf16_f32 {v(PK+p)}, {v(ACC+2*p)}, {v(ACC+2*p+1)}")
    if not final:
        k.e(f"""
        buffer_store_dwordx4 {v(PK,4)}, v5, s[8:11], s44 offen {SC}
        buffer_store_dwordx4 {v(PK+4,4)}, v5, s[8:11], s45 offen {SC}
        buffer_store_dwordx2 {v(PK+8,2)}, v7, s[8:11], s46 offen {SC}
        v_and_b32 {v(ACC+1)}, v8, {v(ACC+1)}
        v_pk_mul_f32 v[14:15], {v(ACC,2)}, {v(ACC,2)}
        """)
        for e in range(2, 20, 2): k.e(f"v_pk_fma_f32 v[14:15], {v(ACC+e,2)}, {v(ACC+e,2)}, v[14:15]")
        k.e(f"""
        v_add_f32 v14, v14, v15
        v_mov_b32 v15, v14
        v_permlane32_swap_b32 v14, v15
        v_add_f32 v14, v14, v15
        v_mov_b32 v15, v14
        v_permlane16_swap_b32 v14, v15
        v_add_f32 v14, v14, v15
        v_cvt_f64_f32 v[14:15], v14
        s_mov_b64 exec, 0xffff
        buffer_atomic_add_f64 v[14:15], v9, s[8:11], s47 offen
        """)
    else:
        k.e(f"""
        buffer_store_dwordx4 {v(PK,4)}, v8, s[16:19], s44 offen
        buffer_store_dwordx4 {v(PK+4,4)}, v8, s[16:19], s44 offen offset:64
        buffer_store_dwordx2 {v(PK+8,2)}, v9, s[16:19], s44 offen offset:128
        """)
    k.e(f"{P}_end:\ns_endpgm")
    return k
```

```python
XSZ = 2048*640*2
HSZ = 2048*1536*2
def al(x): return (x + 0xFFFF) & ~0xFFFF
_o = 0
def alloc(n):
    global _o
    r = _o; _o = al(_o + n); return r
XH0 = alloc(XSZ); XH1 = alloc(XSZ); XH2 = alloc(XSZ); XH3 = alloc(XSZ)
H1 = alloc(HSZ); H2 = alloc(HSZ)
W1P = alloc(16*40*3*1024)
W2P = alloc(8*48*5*1024)
W2F = alloc(8*68*5*1024)
W1T = alloc(96*20*1024)
WP = alloc(XSZ)
SS0 = alloc(16384); SS2 = alloc(16384)
B2P = alloc(4096)
FLG = alloc(65536)
STAMP = alloc(4<<20)
WS_END = _o
WSBYTES = 268435456
```

```python
import sys
from asmlib import *
from layout import *
import k1, kcol, kgemm
ks=[k1.build_k1(), kcol.build_k2(), kgemm.build_gemm1("k3_kernel","K3",XH1,H1), kgemm.build_gemm2("k4_kernel","K4",H1,XH1,XH2,False),
    kcol.build_k5(), kgemm.build_gemm1("k6_kernel","K6",XH3,H2), kgemm.build_gemm2("k7_kernel","K7",H2,XH3,None,True)]
open(sys.argv[1],'w').write(module(ks,ks))
```

```python
import re, os
STAMPS = bool(os.environ.get("STAMPS"))

TRANS = ("v_exp_f32","v_log_f32","v_rcp_f32","v_rsq_f32","v_sqrt_f32","v_sin_f32","v_cos_f32","v_rcp_iflag_f32")

def regs_of(tok):
    tok = tok.strip()
    tok = tok.lstrip('-')
    m = re.fullmatch(r"abs\((.*)\)", tok) or re.fullmatch(r"\|(.*)\|", tok)
    if m: tok = m.group(1)
    m = re.fullmatch(r"([vas])(\d+)", tok)
    if m: return {(m.group(1), int(m.group(2)))}
    m = re.fullmatch(r"([vas])\[(\d+):(\d+)\]", tok)
    if m: return {(m.group(1), i) for i in range(int(m.group(2)), int(m.group(3)) + 1)}
    if tok in ("vcc",): return {("s", "vcc")}
    if tok in ("exec",): return {("s", "exec")}
    if tok == "m0": return {("s", "m0")}
    return set()

class Ins:
    def __init__(self, text):
        self.text = text
        t = text.split(";")[0].strip()
        self.label = t.endswith(":")
        self.directive = t.startswith(".")
        self.w = set(); self.r = set(); self.srcc = set(); self.ab = set()
        self.mn = ""
        self.kind = "other"
        if self.label or self.directive or not t:
            self.kind = "none"; return
        parts = t.split(None, 1)
        mn = parts[0]; self.mn = mn
        rest = parts[1] if len(parts) > 1 else ""
        ops = []; depth = 0; cur = ""
        for ch in rest:
            if ch in "[(": depth += 1
            if ch in "])": depth -= 1
            if ch == "," and depth == 0: ops.append(cur.strip()); cur = ""
            else: cur += ch
        if cur.strip(): ops.append(cur.strip())
        if ops:
            last = ops[-1].split()
            self.mods = last[1:]; ops[-1] = last[0] if last else ""
        else: self.mods = []
        self.ops = ops
        R = [regs_of(o) for o in ops]
        base = re.sub(r"_(e32|e64|dpp|sdwa)$", "", mn)
        self.base = base
        self.dpp = mn.endswith("_dpp")
        if mn.startswith("v_mfma"):
            self.kind = "mfma"
            self.w = R[0]; self.ab = R[1] | R[2]; self.srcc = R[3]; self.r = self.ab | self.srcc
            self.passes = 8 if "32x32x16" in mn else 4 if "16x16x32" in mn else 2 if "4x4x4" in mn else None
            assert self.passes, mn
        elif mn.startswith("v_"):
            self.kind = "valu"
            self.trans = base in TRANS
            if base in ("v_swap_b32", "v_permlane32_swap_b32", "v_permlane16_swap_b32"):
                self.w = R[0] | R[1]; self.r = R[0] | R[1]
            elif base.startswith("v_cmp"):
                self.w = R[0]; self.r = set().union(*R[1:])
                if base.startswith("v_cmpx"): self.w |= {("s", "exec")}
            elif base in ("v_add_co_u32", "v_sub_co_u32", "v_addc_co_u32", "v_subb_co_u32", "v_mad_u64_u32"):
                self.w = R[0] | R[1]; self.r = set().union(*R[2:])
            else:
                self.w = R[0]; self.r = set().union(*R[1:]) if len(R) > 1 else set()
                if base in ("v_fmac_f32", "v_dot2c_f32_bf16", "v_pk_fmac_f16", "v_writelane_b32") or self.dpp: self.r |= R[0]
            self.dot = base.startswith("v_dot")
        elif mn.startswith("buffer_") or mn.startswith("global_"):
            self.kind = "vmem"
            self.lds = "lds" in self.mods or "_lds_" in mn
            if mn in ("buffer_wbl2", "buffer_inv"): return
            if "store" in mn or ("atomic" in mn):
                self.r = set().union(*R)
                self.store = True
                self.data = R[0] if mn.startswith("buffer_") else R[1]
                self.wide = ("x3" in mn or "x4" in mn)
                if "atomic" in mn and "sc0" in self.mods: self.w = R[0]
            elif self.lds:
                self.r = set().union(*R) | {("s", "m0")}
            else:
                self.w = R[0]; self.r = set().union(*R[1:])
        elif mn.startswith("ds_"):
            self.kind = "ds"
            if "write" in mn or mn.startswith("ds_add"): self.r = set().union(*R)
            else: self.w = R[0]; self.r = set().union(*R[1:])
        elif mn.startswith("s_"):
            self.kind = "salu"
            if mn.startswith("s_nop"): self.nop = int(ops[0], 0) + 1
            elif mn.startswith(("s_cmp", "s_waitcnt", "s_barrier", "s_branch", "s_cbranch", "s_endpgm", "s_setprio", "s_sleep")):
                self.r = set().union(*R) if R else set()
            else:
                self.w = R[0] if R else set(); self.r = set().union(*R[1:]) if len(R) > 1 else set()
                if "saveexec" in mn: self.w |= {("s", "exec")}

def need(p, c):
    n = 0
    isv = lambda S: {x for x in S if x[0] in "va"}
    iss = lambda S: {x for x in S if x[0] == "s"}
    if p.kind == "valu":
        pw = isv(p.w); ps = iss(p.w)
        if c.kind == "mfma" and pw & c.r: n = max(n, 3 if getattr(p, "dot", False) else 2)
        if c.kind == "mfma" and ("s", "exec") in ps: n = max(n, 4)
        if c.kind == "valu":
            if c.dpp and pw & c.r: n = max(n, 2)
            if c.dpp and ("s", "exec") in ps: n = max(n, 5)
            if c.base.startswith("v_permlane") and pw & c.r: n = max(n, 2)
            if c.base in ("v_readlane_b32", "v_readfirstlane_b32") and pw & c.r: n = max(n, 1)
            if p.trans and not c.trans and pw & c.r: n = max(n, 1)
            if p.trans and c.trans and pw & c.r: n = max(n, 1)
            if ps & c.r: n = max(n, 4 if c.base in ("v_readlane_b32", "v_writelane_b32") else 2)
            if getattr(p, "dot", False) and (pw & (c.r | c.w)) and not (c.base == p.base): n = max(n, 3)
            if p.mn.endswith("_sdwa") and pw & (c.r | c.w): n = max(n, 1)
        if c.kind in ("vmem", "ds") and p.trans and pw & c.r: n = max(n, 1)
        if c.kind == "vmem" and ps & c.r: n = max(n, 5)
        if c.kind == "salu" and ps & c.r: n = max(n, 1)
    if p.kind == "mfma":
        far = {2: 5, 4: 8, 8: 12}[p.passes]
        if c.kind == "mfma":
            if p.w & c.ab: n = max(n, far)
            if p.w & c.srcc:
                if p.w == c.srcc and p.passes == c.passes: n = max(n, 2 if p.passes == 2 else 0)
                else: n = max(n, {2: 4, 4: 6, 8: 10}[p.passes])
            elif p.w & c.w: n = max(n, far)
        elif c.kind in ("valu", "vmem", "ds"):
            if p.w & (c.r | c.w): n = max(n, far)
            if c.kind == "valu" and p.srcc & c.w: n = max(n, {2: 1, 4: 3, 8: 7}[p.passes])
    if p.kind == "vmem" and getattr(p, "store", False) and p.wide:
        if p.data & c.w: n = max(n, 2)
    if p.kind == "ds" and ("b128" in p.mn or "b96" in p.mn) and "write" in p.mn:
        pass
    if p.kind == "salu" and ("s", "m0") in p.w:
        if c.kind == "vmem" and getattr(c, "lds", False): n = max(n, 1)
    return n

def pad_hazards(lines):
    out = []
    hist = []
    for ln in lines:
        c = Ins(ln)
        if c.kind == "none":
            out.append(ln); continue
        req = 0
        d = 0
        for p in reversed(hist):
            k = need(p, c)
            if k - d > req: req = k - d
            d += getattr(p, "nop", 1)
            if d > 20: break
        while req > 0:
            k = min(req, 16)
            nop = "    s_nop %d" % (k - 1)
            out.append(nop); hist.append(Ins(nop)); req -= k
        out.append(ln); hist.append(c)
        if len(hist) > 64: hist = hist[-32:]
    return out

class Kern:
    def __init__(self, name, grid, block, lds, nv, na=0, ns=96, sid=0):
        self.sid = sid
        self.name, self.grid, self.block, self.lds = name, grid, block, lds
        self.nv, self.na, self.ns = nv, na, ns
        self.L = []
        self.idx = None
        self.nst = 0
    def stamp(self, i):
        if STAMPS:
            op = "s_memtime" if os.environ.get("STAMPS") == "2" else "s_memrealtime"
            self.e(f"{op} s[{64+2*i}:{65+2*i}]")
    def end(self):
        if STAMPS:
            from layout import STAMP
            self.e("s_waitcnt vmcnt(0)")
            self.stamp(15)
            self.e(f"""s_mov_b64 exec, 1
            s_lshl_b32 s62, s2, 3
            s_add_u32 s62, s62, s3
            s_lshl_b32 s62, s62, 7
            s_add_u32 s62, s62, {STAMP + self.sid*256*8*128}
            v_mov_b32 v0, 0
            s_waitcnt lgkmcnt(0)""")
            for i in range(8):
                for j in range(4): self.e(f"v_mov_b32 v{4+j}, s{64+4*i+j}")
                self.e(f"buffer_store_dwordx4 v[4:7], v0, s[8:11], s62 offen offset:{16*i}")
        self.e("s_endpgm")
    def zero_stamps(self):
        if STAMPS:
            for i in range(16): self.e(f"s_mov_b64 s[{64+2*i}:{65+2*i}], 0")
    def e(self, s):
        for ln in s.split("\n"):
            ln = ln.strip()
            if not ln: continue
            self.L.append(ln if (ln.endswith(":") or ln.startswith(".")) else "    " + ln)
    def text(self):
        body = pad_hazards(self.L)
        return (f".globl {self.name}\n.p2align 8\n.type {self.name},@function\n{self.name}:\n" + "\n".join(body) + "\n")
    def desc(self):
        acc = (self.nv + 3) // 4 * 4
        tot = acc + self.na if self.na else self.nv
        return (f".p2align 6\n.amdhsa_kernel {self.name}\n  .amdhsa_next_free_vgpr {tot}\n  .amdhsa_next_free_sgpr {self.ns}\n"
                f"  .amdhsa_accum_offset {acc}\n  .amdhsa_group_segment_fixed_size 0\n  .amdhsa_kernarg_size 88\n"
                f"  .amdhsa_user_sgpr_count 2\n  .amdhsa_user_sgpr_kernarg_segment_ptr 1\n  .amdhsa_system_sgpr_workgroup_id_x 1\n"
                f"  .amdhsa_float_denorm_mode_32 3\n"
                f".end_amdhsa_kernel\n")
    def launch(self):
        return f"; @launch kernel={self.name} grid=({self.grid},1,1) block=({self.block},1,1) lds={self.lds}\n"

def v(i, n=1): return f"v{i}" if n == 1 else f"v[{i}:{i+n-1}]"
def a(i, n=1): return f"a{i}" if n == 1 else f"a[{i}:{i+n-1}]"
def s(i, n=1): return f"s{i}" if n == 1 else f"s[{i}:{i+n-1}]"
import struct
def fhex(x): return "0x%08x" % struct.unpack("<I", struct.pack("<f", x))[0]

def module(kernels, order, header=""):
    out = header
    for k in order: out += k.launch()
    out += '.amdgcn_target "amdgcn-amd-amdhsa--gfx950"\n.text\n'
    for k in kernels: out += k.text()
    out += '.section .rodata,"a"\n'
    for k in kernels: out += k.desc()
    return out
```

```python
from asmlib import *
from layout import *
import math
SRD3 = "0x00020000"

def srd(k, r, nbytes):
    k.e(f"s_mov_b32 s{r+2}, {nbytes}\ns_mov_b32 s{r+3}, {SRD3}")

def fgen_seeds(k, st, scb, vi, vg, T):
    c, jj, ph, amp, x = T+27, T+28, T+29, T+30, T+31
    k.e(f"""
    s_lshr_b32 s40, s{st}, 1
    s_lshl_b32 s40, s40, 5
    s_and_b32 s41, s{st}, 1
    s_lshl_b32 s41, s41, 2
    s_add_u32 s40, s40, s41
    s_mul_i32 s41, s{scb}, 80
    s_add_u32 s40, s40, s41
    s_cmp_eq_u32 s{st}, 4
    s_cselect_b32 s41, 2, 3
    v_lshrrev_b32 {v(c)}, 2, {v(vi)}
    v_lshlrev_b32 {v(c)}, s41, {v(c)}
    v_and_b32 {v(x)}, 3, {v(vi)}
    v_add3_u32 {v(c)}, {v(c)}, {v(x)}, s40
    v_lshrrev_b32 {v(jj)}, 1, {v(c)}
    v_and_b32 {v(ph)}, 1, {v(c)}
    v_cvt_f32_u32 {v(ph)}, {v(ph)}
    v_mul_f32 {v(ph)}, {fhex(0.25)}, {v(ph)}
    v_mov_b32 {v(amp)}, {fhex(math.sqrt(2/640))}
    v_mov_b32 {v(x)}, {fhex(math.sqrt(1/640))}
    v_cmp_gt_u32 vcc, 2, {v(c)}
    v_cndmask_b32 {v(amp)}, {v(amp)}, {v(x)}, vcc
    v_cndmask_b32 {v(ph)}, {v(ph)}, 0, vcc
    v_mov_b32 {v(x)}, 320
    v_cmp_eq_u32 vcc, 0, {v(c)}
    v_cndmask_b32 {v(jj)}, {v(jj)}, {v(x)}, vcc
    v_and_b32 {v(T+26)}, 1, {v(jj)}
    v_mul_u32_u24 {v(T+26)}, 0x8000, {v(T+26)}
    v_lshl_or_b32 {v(T+26)}, {v(T+26)}, 16, {v(T+26)}
    v_lshlrev_b32 {v(x)}, 3, {v(vg)}
    v_mul_u32_u24 {v(x)}, {v(x)}, {v(jj)}
    v_cvt_f32_u32 {v(x)}, {v(x)}
    v_cvt_f32_u32 {v(jj)}, {v(jj)}
    s_mov_b32 s42, {fhex(1/640)}
    s_mov_b32 s43, {fhex(32.0)}
    v_mul_f32 {v(T+24)}, {fhex(0.05)}, {v(jj)}
    v_cos_f32 {v(T+24)}, {v(T+24)}
    v_fma_f32 {v(c)}, {v(jj)}, s43, {v(x)}
    v_add_f32 {v(T+24)}, {v(T+24)}, {v(T+24)}
    """)
    for e in range(8):
        k.e(f"""
        v_fma_f32 {v(T+e)}, {v(x)}, s42, {v(ph)}
        v_fma_f32 {v(T+8+e)}, {v(c)}, s42, {v(ph)}
        v_cos_f32 {v(T+e)}, {v(T+e)}
        v_cos_f32 {v(T+8+e)}, {v(T+8+e)}
        """)
        if e < 7: k.e(f"v_add_f32 {v(x)}, {v(x)}, {v(jj)}\nv_add_f32 {v(c)}, {v(c)}, {v(jj)}")
    for e in range(0, 16, 2):
        k.e(f"v_pk_mul_f32 {v(T+e,2)}, {v(T+e,2)}, {v(amp,2)} op_sel_hi:[1,0]")

def fgen_rest(k, st, vlane16, T):
    a0, a1 = T+27, T+28
    k.e(f"""
    s_lshl_b32 s40, s{st}, 10
    v_add_u32 {v(a0)}, s40, {v(vlane16)}
    v_add_u32 {v(a1)}, 51200, {v(a0)}
    """)
    for q in range(10):
        src = T if q % 2 == 0 else T+8
        oth = T+8 if q % 2 == 0 else T
        if q >= 2:
            for e in range(0, 8, 2):
                k.e(f"v_pk_fma_f32 {v(src+e,2)}, {v(oth+e,2)}, {v(T+24,2)}, {v(src+e,2)} op_sel_hi:[1,0,1] neg_lo:[0,0,1] neg_hi:[0,0,1]")
        for p in range(4):
            k.e(f"v_cvt_pk_bf16_f32 {v(T+16+p)}, {v(src+2*p)}, {v(src+2*p+1)}")
        k.e(f"ds_write_b128 {v(a0)}, {v(T+16,4)} offset:{q*5120}")
        for p in range(4):
            k.e(f"v_xor_b32 {v(T+20+p)}, {v(T+26)}, {v(T+16+p)}")
        k.e(f"ds_write_b128 {v(a1)}, {v(T+20,4)} offset:{q*5120}")

def unit_loop(k, nun, B, ACC, LB, vl0, vl1, swap, vm_after):
    def rd(q):
        base = vl0 if q < 10 else vl1
        for t in range(5):
            k.e(f"ds_read_b128 {v(LB+(q%2)*20+t*4,4)}, {v(base)} offset:{(q%10)*5120+t*1024}")
    rd(0)
    for q in range(20):
        if q < 19: rd(q+1)
        k.e(f"s_waitcnt vmcnt({min(63,(19-q)*nun+vm_after)})")
        if q == 0: k.stamp(6)
        for t in range(5):
            k.e(f"s_waitcnt lgkmcnt({(5 if q<19 else 0)+4-t})")
            for u in range(nun):
                A = v(LB+(q%2)*20+t*4, 4); Bf = v(B+(q*nun+u)*4, 4); C = v(ACC+(u*5+t)*4, 4)
                if swap: A, Bf = Bf, A
                k.e(f"v_mfma_f32_16x16x32_bf16 {C}, {A}, {Bf}, {C if q else 0}")

def build_k1():
    k = Kern("k1_kernel", 256, 512, 102400, 256, sid=0)
    B, ACC, LB, T = 64, 144, 164, 8
    k.zero_stamps(); k.stamp(0)
    k.e(f"""
    s_cmp_ge_u32 s2, 256
    s_cbranch_scc1 K1_end
    s_load_dwordx2 s[16:17], s[0:1], 0
    s_load_dwordx2 s[20:21], s[0:1], 48
    s_load_dwordx2 s[8:9], s[0:1], 80
    s_load_dwordx2 s[24:25], s[0:1], 8
    s_load_dwordx2 s[28:29], s[0:1], 16
    s_load_dwordx2 s[32:33], s[0:1], 32
    s_load_dwordx2 s[36:37], s[0:1], 56
    v_lshrrev_b32 v1, 6, v0
    v_and_b32 v0, 63, v0
    v_readfirstlane_b32 s3, v1
    v_and_b32 v1, 15, v0
    v_lshrrev_b32 v2, 4, v0
    v_lshlrev_b32 v3, 4, v0
    v_add_u32 v4, 51200, v3
    s_and_b32 s4, s2, 7
    s_lshr_b32 s5, s2, 3
    s_and_b32 s6, s5, 7
    s_lshr_b32 s7, s5, 3
    s_lshl_b32 s4, s4, 2
    s_add_u32 s7, s7, s4
    s_mov_b32 s46, 0
    """)
    srd(k, 8, WSBYTES); srd(k, 16, XSZ); srd(k, 20, 1536*640*2); srd(k, 24, 2048*321*2); srd(k, 28, 2048*321*2); srd(k, 32, 640*1536*2); srd(k, 36, 1280)
    k.e(f"""
    v_mul_u32_u24 v5, 1280, v1
    v_lshl_add_u32 v5, v2, 4, v5
    s_cmp_eq_u32 s3, 7
    s_cbranch_scc1 K1_side
    s_cmp_gt_u32 s3, 4
    s_cbranch_scc1 K1_noseed
    """)
    fgen_seeds(k, 3, 6, 1, 2, T)
    k.e(f"""
    K1_noseed:""")
    k.stamp(1)
    k.e("s_waitcnt lgkmcnt(0)")
    k.stamp(2)
    k.e(f"""
    s_cmp_gt_u32 s3, 3
    s_cbranch_scc1 K1_w2
    s_lshl_b32 s44, s7, 2
    s_add_u32 s44, s44, s3
    s_mul_i32 s45, s44, {16*1280}
    """)
    for q in range(20): k.e(f"buffer_load_dwordx4 {v(B+4*q,4)}, v5, s[16:19], s45 offen offset:{64*q}")
    k.stamp(3)
    fgen_rest(k, 3, 3, T)
    k.e("s_waitcnt lgkmcnt(0)")
    k.stamp(4)
    k.e("s_barrier\nK1_xloop:")
    k.stamp(5)
    unit_loop(k, 1, B, ACC, LB, 3, 4, False, 0)
    k.stamp(7)
    k.e(f"""
    s_cmp_eq_u32 s46, 1
    s_cbranch_scc1 K1_b2epi
    s_mul_i32 s45, s6, {10*32768}
    s_lshl_b32 s44, s44, 8
    s_add_u32 s45, s45, s44
    s_add_u32 s45, s45, {XH0}
    v_lshlrev_b32 v6, 15, v2
    v_lshl_add_u32 v6, v1, 4, v6
    v_lshrrev_b32 v7, 1, v2
    v_lshlrev_b32 v7, 15, v7
    v_lshl_add_u32 v7, v1, 4, v7
    v_and_b32 v8, 1, v2
    v_lshl_add_u32 v7, v8, 3, v7
    s_add_u32 s47, s45, {4*32768}
    s_add_u32 s48, s45, {8*32768}
    """)
    for p in range(10): k.e(f"v_cvt_pk_bf16_f32 {v(12+p)}, {v(ACC+2*p)}, {v(ACC+2*p+1)}")
    k.e(f"""
    buffer_store_dwordx4 v[12:15], v6, s[8:11], s45 offen
    buffer_store_dwordx4 v[16:19], v6, s[8:11], s47 offen
    buffer_store_dwordx2 v[20:21], v7, s[8:11], s48 offen""")
    k.end()
    k.e(f"""
    K1_b2epi:
    s_mul_i32 s45, s6, 320
    s_add_u32 s45, s45, {B2P}
    v_lshlrev_b32 v6, 4, v2
    v_cmp_eq_u32 vcc, 0, v1
    s_and_saveexec_b64 s[50:51], vcc
    s_nop 7
    """)
    for t in range(5): k.e(f"buffer_store_dwordx4 {v(ACC+4*t,4)}, v6, s[8:11], s45 offen offset:{64*t}")
    k.end()
    k.e(f"""
    K1_w2:
    s_mul_i32 s44, s7, 3
    s_add_u32 s44, s44, s3
    s_sub_u32 s44, s44, 4
    s_mul_i32 s45, s44, {16*1280}
    """)
    for q in range(20): k.e(f"buffer_load_dwordx4 {v(B+4*q,4)}, v5, s[20:23], s45 offen offset:{64*q}")
    k.stamp(3)
    k.e("s_cmp_gt_u32 s3, 4\ns_cbranch_scc1 K1_w2b")
    fgen_rest(k, 3, 3, T)
    k.e("K1_w2b:\ns_waitcnt lgkmcnt(0)")
    k.stamp(4)
    k.e("s_barrier")
    k.stamp(5)
    unit_loop(k, 1, B, ACC, LB, 3, 4, True, 0)
    k.stamp(7)
    k.e(f"""
    s_lshr_b32 s45, s44, 1
    s_mul_i32 s47, s6, 48
    s_add_u32 s45, s45, s47
    s_mul_i32 s45, s45, 5120
    s_and_b32 s47, s44, 1
    s_lshl_b32 s47, s47, 9
    s_add_u32 s45, s45, s47
    s_add_u32 s45, s45, {W2P}
    s_add_u32 s47, s45, 4096
    v_lshrrev_b32 v7, 1, v2
    v_lshlrev_b32 v7, 8, v7
    v_lshl_add_u32 v7, v1, 4, v7
    v_and_b32 v8, 1, v2
    v_lshl_add_u32 v7, v8, 3, v7
    """)
    for p in range(10): k.e(f"v_cvt_pk_bf16_f32 {v(12+p)}, {v(ACC+2*p)}, {v(ACC+2*p+1)}")
    for t in range(4): k.e(f"buffer_store_dwordx2 {v(12+2*t,2)}, v7, s[8:11], s45 offen offset:{1024*t}")
    k.e("buffer_store_dwordx2 v[20:21], v7, s[8:11], s47 offen")
    k.end()
    ST, SL, WL, WO, WR = 144, 184, 8, 224, 64
    k.e(f"""
    K1_side:
    v_lshrrev_b32 v40, 3, v0
    v_and_b32 v41, 7, v0
    v_mul_u32_u24 v42, 1280, v40
    v_lshl_add_u32 v42, v41, 4, v42
    s_lshl_b32 s44, s7, 3
    s_add_u32 s44, s44, s6
    s_mul_i32 s45, s44, {8*1280}
    s_mul_i32 s47, s2, 3277
    s_lshr_b32 s47, s47, 16
    s_mul_i32 s48, s47, 20
    s_sub_u32 s48, s2, s48
    v_mul_u32_u24 v43, {8*3072}, v2
    v_lshl_add_u32 v43, v1, 4, v43
    s_mul_i32 s49, s48, {32*3072}
    s_lshl_b32 s50, s47, 8
    s_add_u32 s49, s49, s50
    s_lshr_b32 s52, s2, 2
    s_and_b32 s53, s2, 3
    s_and_b32 s54, s52, 1
    s_bfe_u32 s55, s52, 0x10001
    s_bfe_u32 s56, s52, 0x10002
    s_lshr_b32 s57, s52, 3
    s_lshl_b32 s58, s55, 5
    s_lshl_b32 s59, s54, 4
    s_add_u32 s58, s58, s59
    s_add_u32 s58, s58, s56
    s_lshl_b32 s59, s57, 8
    s_add_u32 s58, s58, s59
    s_mul_i32 s58, s58, 642
    s_mul_i32 s59, s53, 160
    s_add_u32 s60, s58, s59
    s_add_u32 s61, s60, {64*642}
    s_add_u32 s62, s60, {128*642}
    s_add_u32 s63, s60, {192*642}
    v_mul_u32_u24 v44, {2*642}, v41
    v_lshl_add_u32 v44, v40, 1, v44
    s_cmp_eq_u32 s53, 0
    s_cselect_b32 s59, 640, 0
    v_mov_b32 v45, s59
    v_cmp_eq_u32 vcc, 0, v40
    v_cndmask_b32 v45, 0, v45, vcc
    v_add_u32 v45, v45, v44
    s_waitcnt lgkmcnt(0)
    """)
    for i in range(10): k.e(f"buffer_load_dwordx4 {v(ST+4*i,4)}, v42, s[16:19], s45 offen offset:{128*i}")
    for e in range(8):
        k.e(f"buffer_load_dwordx4 {v(WL+4*e,4)}, v43, s[32:35], s49 offen")
        k.e(f"s_add_u32 s49, s49, 3072")
    def wload(task):
        for r in range(4):
            va = "v45" if task == 0 else "v44"
            k.e(f"buffer_load_ushort {v(WR+8*task+r)}, {va}, s[24:27], s{60+r} offen offset:{16*task}")
            k.e(f"buffer_load_ushort {v(WR+8*task+4+r)}, {va}, s[28:31], s{60+r} offen offset:{16*task}")
    for task in range(5): wload(task)
    k.stamp(3)
    k.e("s_barrier")
    k.stamp(8)
    k.e("s_waitcnt vmcnt(48)")
    k.stamp(9)
    for i in range(40):
        k.e(f"v_lshlrev_b32 {v(SL+i)}, 16, {v(ST+i)}\nv_and_b32 {v(ST+i)}, 0xffff0000, {v(ST+i)}")
    k.e("s_waitcnt vmcnt(40)")
    for task in range(5, 7): wload(task)
    k.e(f"v_pk_add_f32 v[46:47], {v(ST,2)}, {v(SL,2)}")
    k.e(f"v_pk_add_f32 v[48:49], {v(ST+2,2)}, {v(SL+2,2)}")
    for i in range(4, 40, 2):
        k.e(f"v_pk_add_f32 v[46:47], v[46:47], {v(ST+i,2)}\nv_pk_add_f32 v[48:49], v[48:49], {v(SL+i,2)}")
    red8 = lambda r: k.e(f"""
    v_add_f32_dpp {r}, {r}, {r} quad_perm:[1,0,3,2] row_mask:0xf bank_mask:0xf
    v_add_f32_dpp {r}, {r}, {r} quad_perm:[2,3,0,1] row_mask:0xf bank_mask:0xf
    v_add_f32_dpp {r}, {r}, {r} row_half_mirror row_mask:0xf bank_mask:0xf""")
    k.e("v_pk_add_f32 v[46:47], v[46:47], v[48:49]\nv_add_f32 v46, v46, v47")
    red8("v46")
    k.e(f"v_mul_f32 v46, {fhex(-1/640)}, v46\nv_mov_b32 v48, 0\nv_mov_b32 v49, 0\nv_mov_b32 v50, 0\nv_mov_b32 v51, 0")
    for i in range(0, 40, 2):
        k.e(f"v_pk_add_f32 {v(ST+i,2)}, {v(ST+i,2)}, v[46:47] op_sel_hi:[1,0]\nv_pk_add_f32 {v(SL+i,2)}, {v(SL+i,2)}, v[46:47] op_sel_hi:[1,0]")
        k.e(f"v_pk_fma_f32 v[48:49], {v(ST+i,2)}, {v(ST+i,2)}, v[48:49]\nv_pk_fma_f32 v[50:51], {v(SL+i,2)}, {v(SL+i,2)}, v[50:51]")
    k.e("v_pk_add_f32 v[48:49], v[48:49], v[50:51]\nv_add_f32 v48, v48, v49")
    red8("v48")
    k.e(f"""
    v_cvt_f64_f32 v[50:51], v48
    v_lshlrev_b32 v52, 3, v40
    s_lshl_b32 s45, s44, 6
    s_add_u32 s45, s45, {SS0}
    v_cmp_eq_u32 vcc, 0, v41
    s_and_saveexec_b64 s[50:51], vcc
    buffer_store_dwordx2 v[50:51], v52, s[8:11], s45 offen
    s_mov_b64 exec, s[50:51]
    """)
    k.stamp(10)
    k.e("s_waitcnt vmcnt(39)")
    for task in range(7, 10): wload(task)
    k.e(f"""
    s_waitcnt vmcnt(55)
    s_mov_b32 s50, 0x05040100
    s_mov_b32 s51, 0x07060302
    s_mul_i32 s49, s47, {8*20}
    s_add_u32 s49, s49, s48
    s_lshl_b32 s49, s49, 10
    s_add_u32 s49, s49, {W1T}
    s_cmp_ge_u32 s2, 240
    s_cbranch_scc1 K1_zero
    """)
    for t8 in range(8):
        m, hl = t8 >> 1, t8 & 1
        for pp in range(4):
            k.e(f"v_perm_b32 {v(WO+4*t8+pp)}, {v(WL+4*(2*pp+1)+m)}, {v(WL+4*(2*pp)+m)}, s{50+hl}")
        k.e(f"buffer_store_dwordx4 {v(WO+4*t8,4)}, v3, s[8:11], s49 offen\ns_add_u32 s49, s49, {20*1024}")
    k.e(f"""
    s_branch K1_wfmt
    K1_zero:
    s_sub_u32 s49, s2, 240
    s_lshl_b32 s49, s49, 10
    s_add_u32 s49, s49, {SS2}
    v_mov_b32 v224, 0
    v_mov_b32 v225, 0
    v_mov_b32 v226, 0
    v_mov_b32 v227, 0
    buffer_store_dwordx4 v[224:227], v3, s[8:11], s49 offen
    K1_wfmt:
    s_mul_i32 s49, s53, {80*8192}
    s_lshl_b32 s58, s56, 12
    s_add_u32 s49, s49, s58
    s_lshl_b32 s58, s55, 11
    s_add_u32 s49, s49, s58
    s_lshl_b32 s58, s57, 8
    s_add_u32 s49, s49, s58
    s_lshl_b32 s58, s54, 7
    s_add_u32 s49, s49, s58
    s_add_u32 s49, s49, {WP}
    v_lshlrev_b32 v46, 13, v40
    v_lshl_add_u32 v46, v41, 4, v46
    s_waitcnt vmcnt(0)
    """)
    k.stamp(11)
    for task in range(10):
        for r in range(4):
            k.e(f"v_lshl_or_b32 {v(WR+8*task+r)}, {v(WR+8*task+4+r)}, 16, {v(WR+8*task+r)}")
        k.e(f"buffer_store_dwordx4 {v(WR+8*task,4)}, v46, s[8:11], s49 offen\ns_add_u32 s49, s49, 65536")
    k.e(f"""
    s_cmp_lg_u32 s7, 0
    s_cbranch_scc1 K1_fin
    s_mov_b32 s46, 1
    s_waitcnt vmcnt(0)
    """)
    for q in range(20): k.e(f"buffer_load_dwordx4 {v(B+4*q,4)}, v5, s[36:39], 0 offen offset:{64*q}")
    k.e("s_branch K1_xloop\nK1_fin:")
    k.end()
    k.e("K1_end:\ns_endpgm")
    return k
```

```python
from asmlib import *
from layout import *
import math
SRD3 = "0x00020000"
SC = os.environ.get("SC", "")

def srd(k, r, nbytes):
    k.e(f"s_mov_b32 s{r+2}, {nbytes}\ns_mov_b32 s{r+3}, {SRD3}")

class VM:
    def __init__(self, k): self.k = k; self.n = 0; self.tag = {}
    def op(self, text, tag=None):
        self.k.e(text); self.n += 1
        if tag is not None: self.tag[tag] = self.n
    def wait(self, tag):
        c = self.n - self.tag[tag]
        assert c <= 63, c
        self.k.e(f"s_waitcnt vmcnt({c})")

def fgen(k, sc0, sd0, th, vi, vg, T, FR, hook=None):
    KA, SM, c, jj, ph, amp, x = T+16, T+18, T+19, T+20, T+21, T+22, T+17
    hk = hook or (lambda: None)
    k.e(f"""
    v_add_u32 {v(c)}, s{sc0}, {v(vi)}
    v_add_u32 {v(c)}, {16*th}, {v(c)}
    v_lshrrev_b32 {v(jj)}, 1, {v(c)}
    v_and_b32 {v(ph)}, 1, {v(c)}
    v_cvt_f32_u32 {v(ph)}, {v(ph)}
    v_mul_f32 {v(ph)}, {fhex(0.25)}, {v(ph)}
    v_mov_b32 {v(amp)}, {fhex(math.sqrt(2/640))}
    v_mov_b32 {v(x)}, {fhex(math.sqrt(1/640))}
    v_cmp_gt_u32 vcc, 2, {v(c)}
    v_cndmask_b32 {v(amp)}, {v(amp)}, {v(x)}, vcc
    v_cndmask_b32 {v(ph)}, {v(ph)}, 0, vcc
    v_mov_b32 {v(x)}, 320
    v_cmp_eq_u32 vcc, 0, {v(c)}
    v_cndmask_b32 {v(jj)}, {v(jj)}, {v(x)}, vcc
    v_and_b32 {v(SM)}, 1, {v(jj)}
    v_mul_u32_u24 {v(SM)}, 0x8000, {v(SM)}
    v_lshl_or_b32 {v(SM)}, {v(SM)}, 16, {v(SM)}
    v_lshl_add_u32 {v(x)}, {v(vg)}, 3, s{sd0}
    v_mul_u32_u24 {v(x)}, {v(x)}, {v(jj)}
    v_cvt_f32_u32 {v(x)}, {v(x)}
    v_cvt_f32_u32 {v(jj)}, {v(jj)}
    s_mov_b32 s42, {fhex(1/640)}
    s_mov_b32 s43, {fhex(-640.0)}
    v_mul_f32 {v(c)}, s42, {v(x)}
    v_floor_f32 {v(c)}, {v(c)}
    v_fma_f32 {v(x)}, {v(c)}, s43, {v(x)}
    s_mov_b32 s43, {fhex(32.0)}
    v_mul_f32 {v(KA)}, {fhex(0.05)}, {v(jj)}
    v_cos_f32 {v(KA)}, {v(KA)}
    v_fma_f32 {v(c)}, {v(jj)}, s43, {v(x)}
    v_add_f32 {v(KA)}, {v(KA)}, {v(KA)}
    """)
    hk()
    for e in range(8):
        k.e(f"""
        v_fma_f32 {v(T+e)}, {v(x)}, s42, {v(ph)}
        v_fma_f32 {v(T+8+e)}, {v(c)}, s42, {v(ph)}
        v_cos_f32 {v(T+e)}, {v(T+e)}
        v_cos_f32 {v(T+8+e)}, {v(T+8+e)}
        """)
        if e < 7: k.e(f"v_add_f32 {v(x)}, {v(x)}, {v(jj)}\nv_add_f32 {v(c)}, {v(c)}, {v(jj)}")
        if e % 2: hk()
    for e in range(0, 16, 2):
        k.e(f"v_pk_mul_f32 {v(T+e,2)}, {v(T+e,2)}, {v(amp,2)} op_sel_hi:[1,0]")
    for q in range(10):
        src = T if q % 2 == 0 else T+8
        oth = T+8 if q % 2 == 0 else T
        if q >= 2:
            for e in range(0, 8, 2):
                k.e(f"v_pk_fma_f32 {v(src+e,2)}, {v(oth+e,2)}, {v(KA,2)}, {v(src+e,2)} op_sel_hi:[1,0,1] neg_lo:[0,0,1] neg_hi:[0,0,1]")
        d0, d1 = FR+(q*2+th)*4, FR+((q+10)*2+th)*4
        for p in range(4): k.e(f"v_cvt_pk_bf16_f32 {v(d0+p)}, {v(src+2*p)}, {v(src+2*p+1)}")
        for p in range(4): k.e(f"v_xor_b32 {v(d1+p)}, {v(SM)}, {v(d0+p)}")
        hk()

def rowdft_loop(k, nun, FR, ACC, RING, NR, rd, nrd, swap, sync):
    items = [(q, u) for q in range(20) for u in range(nun)]
    RA = NR-2
    issued = 0
    def issue(i):
        q, u = items[i]
        if u == 0 and q % 4 == 0: sync(q//4)
        rd(q, u, RING+(i % NR)*4)
    for i in range(RA): issue(i)
    for i, (q, u) in enumerate(items):
        ahead = min(RA, len(items)-i) - 1
        k.e(f"s_waitcnt lgkmcnt({min(15, ahead*nrd)})")
        for th in range(2):
            A = v(FR+(q*2+th)*4, 4); B = v(RING+(i % NR)*4, 4); C = v(ACC+(u*2+th)*4, 4)
            if swap: A, B = B, A
            k.e(f"v_mfma_f32_16x16x32_bf16 {C}, {A}, {B}, {C if q else 0}")
            if th == 0 and i+RA < len(items): issue(i+RA)

def rows_rd(k, va):
    def rd(q, u, reg):
        off = u*20480 + (q >> 1)*2048
        hi = off >= 61440
        if hi: off -= 61440
        k.e(f"ds_read_b128 {v(reg,4)}, {v(va+(q&1)+2*hi)} offset:{off}")
    return rd

def rows_addr(k, va, vi, vg):
    k.e(f"""
    v_and_b32 {v(va)}, 7, {v(vi)}
    v_xor_b32 {v(va)}, {v(va)}, {v(vg)}
    v_lshlrev_b32 {v(va)}, 4, {v(va)}
    v_lshl_add_u32 {v(va)}, {v(vi)}, 7, {v(va)}
    v_xor_b32 {v(va+1)}, 64, {v(va)}
    v_add_u32 {v(va+2)}, 61440, {v(va)}
    v_add_u32 {v(va+3)}, 61440, {v(va+1)}
    """)

def build_k1():
    k = Kern("k1_kernel", 256, 512, 102400, 256, sid=0)
    FR, ACC, RING, NR = 16, 176, 216, 8
    k.zero_stamps(); k.stamp(0)
    k.e(f"""
    s_cmp_ge_u32 s2, 256
    s_cbranch_scc1 K1_end
    s_load_dwordx2 s[16:17], s[0:1], 0
    s_load_dwordx2 s[32:33], s[0:1], 32
    s_load_dwordx2 s[8:9], s[0:1], 80
    s_load_dwordx2 s[24:25], s[0:1], 8
    s_load_dwordx2 s[28:29], s[0:1], 16
    s_load_dwordx2 s[20:21], s[0:1], 48
    v_lshrrev_b32 v1, 6, v0
    v_and_b32 v0, 63, v0
    v_readfirstlane_b32 s3, v1
    v_and_b32 v1, 15, v0
    v_lshrrev_b32 v2, 4, v0
    v_lshlrev_b32 v3, 4, v0
    s_and_b32 s4, s2, 7
    s_lshr_b32 s5, s2, 3
    s_lshl_b32 s4, s4, 5
    s_add_u32 s4, s4, s5
    s_mul_i32 s7, s4, 13108
    s_lshr_b32 s7, s7, 16
    s_mul_i32 s6, s7, 5
    s_sub_u32 s6, s4, s6
    """)
    srd(k, 8, WSBYTES); srd(k, 16, XSZ); srd(k, 20, 1536*640*2); srd(k, 24, 2048*321*2); srd(k, 28, 2048*321*2); srd(k, 32, 640*1536*2)
    k.e(f"""
    s_cmp_gt_u32 s3, 3
    s_cbranch_scc1 K1_load
    s_cmp_ge_u32 s7, 50
    s_cbranch_scc1 K1_end
    s_lshl_b32 s45, s6, 7
    s_lshl_b32 s44, s3, 5
    s_add_u32 s44, s44, s45
    """)
    fgen(k, 44, 45, 0, 1, 2, RING, FR)
    fgen(k, 44, 45, 1, 1, 2, RING, FR)
    k.e("s_waitcnt lgkmcnt(0)")
    k.stamp(1)
    def sync(ch):
        k.e("s_barrier")
        if ch in (0, 1, 4): k.stamp(2+ch)
    k.e("s_cmp_ge_u32 s7, 26\ns_cbranch_scc1 K1_w1")
    rows_addr(k, 4, 1, 2)
    rowdft_loop(k, 5, FR, ACC, RING, NR, rows_rd(k, 4), 1, False, sync)
    k.stamp(7)
    k.e(f"""
    s_lshl_b32 s46, s44, 12
    s_mul_i32 s47, s7, {5*128}
    s_add_u32 s46, s46, s47
    s_add_u32 s46, s46, {XH0}
    s_add_u32 s47, s46, 65536
    v_lshlrev_b32 v8, 14, v2
    v_lshl_add_u32 v8, v1, 3, v8
    """)
    for u in range(5):
        if u == 3: k.e("s_cmp_eq_u32 s7, 25\ns_cbranch_scc1 K1_fin")
        for th in range(2):
            A = ACC+(u*2+th)*4; P = RING+(u*2+th)*2
            k.e(f"v_cvt_pk_bf16_f32 {v(P)}, {v(A)}, {v(A+1)}\nv_cvt_pk_bf16_f32 {v(P+1)}, {v(A+2)}, {v(A+3)}")
            k.e(f"buffer_store_dwordx2 {v(P,2)}, v8, s[8:11], s{46+th} offen offset:{128*u} {SC}")
    k.e("K1_fin:")
    k.end()
    k.e(f"""
    K1_w1:
    v_bfe_u32 v8, v0, 3, 1
    v_and_b32 v9, 1, v2
    v_lshl_add_u32 v8, v9, 1, v8
    v_lshlrev_b32 v8, 5, v8
    v_and_b32 v9, 3, v0
    v_lshl_add_u32 v8, v9, 3, v8
    v_bfe_u32 v9, v0, 2, 2
    v_lshl_add_u32 v8, v9, 7, v8
    v_lshl_add_u32 v4, v2, 10, v8
    v_xor_b32 v5, 32, v4
    v_xor_b32 v6, 64, v4
    v_xor_b32 v7, 0x60, v4
    v_add_u32 v8, 40960, v4
    v_add_u32 v9, 40960, v5
    v_add_u32 v10, 40960, v6
    v_add_u32 v11, 40960, v7
    """)
    def rd1(q, u, reg):
        b = 4+u+(4 if q >= 10 else 0)
        for hh in range(2):
            k.e(f"ds_read_b64_tr_b16 {v(reg+2*hh,2)}, {v(b)} offset:{(q%10)*4096+hh*512}")
    rowdft_loop(k, 4, FR, ACC, RING, NR, rd1, 2, False, sync)
    k.stamp(7)
    k.e(f"""
    s_sub_u32 s46, s7, 26
    s_lshl_b32 s46, s46, 2
    s_lshr_b32 s47, s44, 5
    s_mul_i32 s47, s47, 6144
    s_add_u32 s47, s47, {W1P}
    """)
    for u in range(4):
        A = ACC+u*8; P = RING+u*4
        k.e(f"""
        s_mul_i32 s48, s46, 43
        s_lshr_b32 s48, s48, 8
        s_mul_i32 s49, s48, {122880-6*1024}
        s_lshl_b32 s48, s46, 10
        s_add_u32 s48, s48, s49
        s_add_u32 s48, s48, s47
        s_add_u32 s46, s46, 1
        """)
        for p in range(4): k.e(f"v_cvt_pk_bf16_f32 {v(P+p)}, {v(A+2*p)}, {v(A+2*p+1)}")
        k.e(f"buffer_store_dwordx4 {v(P,4)}, v3, s[8:11], s48 offen {SC}")
    k.end()
    WR = 16
    k.e(f"""
    K1_load:
    s_sub_u32 s12, s3, 4
    v_lshrrev_b32 v4, 3, v0
    v_and_b32 v5, 7, v0
    s_lshr_b32 s52, s2, 2
    s_and_b32 s53, s2, 3
    s_and_b32 s54, s52, 1
    s_bfe_u32 s55, s52, 0x10001
    s_bfe_u32 s56, s52, 0x10002
    s_lshr_b32 s57, s52, 3
    s_lshl_b32 s58, s55, 5
    s_lshl_b32 s59, s54, 4
    s_add_u32 s58, s58, s59
    s_add_u32 s58, s58, s56
    s_lshl_b32 s59, s57, 8
    s_add_u32 s58, s58, s59
    s_mul_i32 s58, s58, 642
    s_mul_i32 s59, s53, 160
    s_add_u32 s58, s58, s59
    s_lshl_b32 s59, s12, 4
    s_add_u32 s36, s58, s59
    s_add_u32 s37, s36, {64*642}
    s_add_u32 s38, s36, {128*642}
    s_add_u32 s39, s36, {192*642}
    v_mul_u32_u24 v8, {2*642}, v4
    v_lshl_add_u32 v8, v5, 1, v8
    s_or_b32 s59, s53, s12
    s_cmp_eq_u32 s59, 0
    s_cselect_b32 s59, 640, 0
    v_mov_b32 v9, s59
    v_cmp_eq_u32 vcc, 0, v5
    v_cndmask_b32 v9, 0, v9, vcc
    v_add_u32 v9, v9, v8
    v_lshlrev_b32 v10, 7, v0
    s_lshl_b32 s40, s2, 13
    s_cmp_ge_u32 s7, 26
    s_cbranch_scc1 K1_load1
    v_xor_b32 v6, v5, v4
    v_lshlrev_b32 v6, 4, v6
    v_mul_u32_u24 v7, 1280, v4
    v_add_u32 v6, v6, v7
    s_mul_i32 s13, s7, {80*1280}
    s_and_b32 s14, s12, 1
    s_mul_i32 s15, s14, {8*1280}
    s_add_u32 s13, s13, s15
    s_lshr_b32 s15, s12, 1
    s_lshl_b32 s41, s15, 7
    s_add_u32 s13, s13, s41
    s_lshl_b32 s14, s14, 10
    s_lshl_b32 s15, s15, 11
    s_add_u32 s14, s14, s15
    s_mov_b32 s15, s6
    s_waitcnt lgkmcnt(0)
    """)
    k.stamp(1)
    def wloads(vm):
        for t in range(3):
            if t == 2: k.e("s_cmp_gt_u32 s12, 1\ns_cselect_b32 s26, 0, s26\ns_cselect_b32 s30, 0, s30")
            for r in range(4):
                va = "v9" if t == 0 else "v8"
                vm.op(f"buffer_load_ushort {v(WR+8*t+r)}, {va}, s[24:27], s{36+r} offen offset:{64*t}")
                vm.op(f"buffer_load_ushort {v(WR+8*t+4+r)}, {va}, s[28:31], s{36+r} offen offset:{64*t}")
        k.e("s_cmp_lg_u32 s12, 3\ns_cselect_b32 s22, 0, s22")
        vm.op("buffer_load_dword v12, v10, s[20:23], s40 offen")
    vm = VM(k)
    for ch in range(5):
        k.e("s_lshl_b32 s41, s15, 8\ns_add_u32 s41, s41, s13\ns_add_u32 s15, s15, 1\ns_cmp_eq_u32 s15, 5\ns_cselect_b32 s15, 0, s15")
        for u in range(5):
            k.e(f"s_add_u32 m0, s14, {u*20480+ch*4096}")
            vm.op("buffer_load_dwordx4 v6, s[16:19], s41 offen lds", ch)
            if u < 4: k.e(f"s_add_u32 s41, s41, {16*1280}")
    k.stamp(2)
    wloads(vm)
    k.stamp(3)
    for ch in range(5):
        vm.wait(ch); k.e("s_barrier")
    k.stamp(4)
    ST, SL = 48, 68
    k.e(f"""
    s_mul_i32 s13, s6, 20480
    s_lshl_b32 s14, s12, 9
    s_add_u32 s13, s13, s14
    v_lshlrev_b32 v6, 7, v2
    v_lshl_add_u32 v6, v5, 4, v6
    v_bfe_u32 v7, v0, 3, 1
    v_lshl_add_u32 v6, v7, 11, v6
    v_add_u32 v6, s13, v6
    """)
    for i in range(5): k.e(f"ds_read_b128 {v(ST+4*i,4)}, v6 offset:{4096*i}")
    k.e("s_waitcnt lgkmcnt(0)")
    for i in range(20): k.e(f"v_lshlrev_b32 {v(SL+i)}, 16, {v(ST+i)}\nv_and_b32 {v(ST+i)}, 0xffff0000, {v(ST+i)}")
    for j in range(4): k.e(f"v_add_f32 {v(88+j)}, {v(ST+j)}, {v(ST+4+j)}")
    for i in range(8, 40): k.e(f"v_add_f32 {v(88+i%4)}, {v(88+i%4)}, {v(ST+i)}")
    red16 = lambda r: k.e(f"""
    v_add_f32_dpp {r}, {r}, {r} quad_perm:[1,0,3,2] row_mask:0xf bank_mask:0xf
    v_add_f32_dpp {r}, {r}, {r} quad_perm:[2,3,0,1] row_mask:0xf bank_mask:0xf
    v_add_f32_dpp {r}, {r}, {r} row_half_mirror row_mask:0xf bank_mask:0xf
    v_add_f32_dpp {r}, {r}, {r} row_mirror row_mask:0xf bank_mask:0xf""")
    k.e("v_add_f32 v88, v88, v89\nv_add_f32 v90, v90, v91\nv_add_f32 v88, v88, v90")
    red16("v88")
    k.e(f"v_mul_f32 v88, {fhex(1/640)}, v88")
    for i in range(40): k.e(f"v_sub_f32 {v(ST+i)}, {v(ST+i)}, v88")
    for j in range(4): k.e(f"v_mul_f32 {v(90+j)}, {v(ST+j)}, {v(ST+j)}")
    for i in range(4, 40): k.e(f"v_fmac_f32 {v(90+i%4)}, {v(ST+i)}, {v(ST+i)}")
    k.e("v_add_f32 v90, v90, v91\nv_add_f32 v92, v92, v93\nv_add_f32 v90, v90, v92")
    red16("v90")
    k.e(f"""
    v_cvt_f64_f32 v[92:93], v90
    s_lshr_b32 s13, s4, 3
    s_lshl_b32 s13, s13, 10
    s_and_b32 s14, s4, 1
    s_lshl_b32 s14, s14, 9
    s_add_u32 s13, s13, s14
    s_lshl_b32 s14, s12, 7
    s_add_u32 s13, s13, s14
    s_bfe_u32 s14, s4, 0x20001
    s_lshl_b32 s14, s14, 3
    s_add_u32 s13, s13, s14
    s_add_u32 s13, s13, {SS0}
    v_lshlrev_b32 v7, 5, v2
    s_cmp_ge_u32 s4, 128
    s_cbranch_scc1 K1_wfmt
    v_cmp_eq_u32 vcc, 0, v1
    s_and_saveexec_b64 s[50:51], vcc
    buffer_store_dwordx2 v[92:93], v7, s[8:11], s13 offen
    s_mov_b64 exec, s[50:51]
    s_branch K1_wfmt
    K1_load1:
    s_cmp_ge_u32 s7, 50
    s_cbranch_scc1 K1_load2
    v_and_b32 v6, 2, v4
    v_xor_b32 v6, v6, v5
    v_lshlrev_b32 v6, 4, v6
    v_mul_u32_u24 v7, 3072, v4
    v_add_u32 v6, v6, v7
    v_xor_b32 v7, 64, v6
    s_sub_u32 s13, s7, 26
    s_lshl_b32 s13, s13, 7
    s_mul_i32 s14, s12, {32*3072}
    s_add_u32 s13, s13, s14
    s_lshl_b32 s14, s12, 12
    s_mov_b32 s15, s6
    s_waitcnt lgkmcnt(0)
    """)
    k.stamp(1)
    vm = VM(k)
    for ch in range(5):
        k.e(f"s_mul_i32 s41, s15, {128*3072}\ns_add_u32 s41, s41, s13\ns_add_u32 s15, s15, 1\ns_cmp_eq_u32 s15, 5\ns_cselect_b32 s15, 0, s15")
        for x in range(4):
            k.e(f"s_add_u32 m0, s14, {ch*16384+x*1024}")
            vm.op(f"buffer_load_dwordx4 v{6+(x&1)}, s[32:35], s41 offen lds", ch)
            if x < 3: k.e(f"s_add_u32 s41, s41, {8*3072}")
    k.stamp(2)
    wloads(vm)
    k.stamp(3)
    for ch in range(5):
        vm.wait(ch); k.e("s_barrier")
    k.stamp(4)
    k.e(f"""
    s_branch K1_wfmt
    K1_load2:
    s_waitcnt lgkmcnt(0)
    """)
    wloads(VM(k))
    k.e(f"""
    s_sub_u32 s13, s4, 250
    s_cmp_ge_u32 s13, 4
    s_cbranch_scc1 K1_wfmt
    s_lshl_b32 s13, s13, 2
    s_add_u32 s13, s13, s12
    s_lshl_b32 s13, s13, 10
    s_add_u32 s13, s13, {SS2}
    v_mov_b32 v48, 0
    v_mov_b32 v49, 0
    v_mov_b32 v50, 0
    v_mov_b32 v51, 0
    buffer_store_dwordx4 v[48:51], v3, s[8:11], s13 offen
    K1_wfmt:
    s_mul_i32 s49, s53, {80*8192}
    s_lshl_b32 s58, s56, 12
    s_add_u32 s49, s49, s58
    s_lshl_b32 s58, s55, 11
    s_add_u32 s49, s49, s58
    s_lshl_b32 s58, s57, 8
    s_add_u32 s49, s49, s58
    s_lshl_b32 s58, s54, 7
    s_add_u32 s49, s49, s58
    s_lshl_b32 s58, s12, 16
    s_add_u32 s49, s49, s58
    s_add_u32 s49, s49, {WP}
    v_lshlrev_b32 v6, 13, v5
    v_lshl_add_u32 v6, v4, 4, v6
    s_waitcnt vmcnt(1)
    """)
    k.stamp(8)
    for t in range(3):
        if t == 2: k.e("s_cmp_gt_u32 s12, 1\ns_cbranch_scc1 K1_fin2")
        for r in range(4):
            k.e(f"v_lshl_or_b32 {v(WR+8*t+r)}, {v(WR+8*t+4+r)}, 16, {v(WR+8*t+r)}")
        k.e(f"buffer_store_dwordx4 {v(WR+8*t,4)}, v6, s[8:11], s49 offen\ns_add_u32 s49, s49, {4*65536}")
    k.e("K1_fin2:")
    k.end()
    k.e("K1_end:\ns_endpgm")
    return k
```

```python
XSZ = 2048*640*2
HSZ = 2048*1536*2
def al(x): return (x + 0xFFFF) & ~0xFFFF
_o = 0
def alloc(n):
    global _o
    r = _o; _o = al(_o + n); return r
XH0 = alloc(XSZ); XH1 = alloc(XSZ); XH2 = alloc(XSZ); XH3 = alloc(XSZ)
H1 = alloc(HSZ); H2 = alloc(HSZ)
W1P = alloc(16*20*6*1024)
W2P = alloc(8*48*5*1024)
W2F = alloc(8*68*5*1024)
WP = alloc(XSZ)
SS0 = alloc(16384); SS2 = alloc(16384)
B2P = alloc(4096)
FLG = alloc(65536)
STAMP = alloc(4<<20)
WS_END = _o
WSBYTES = 268435456
```

```python
import re, os
STAMPS = bool(os.environ.get("STAMPS"))

TRANS = ("v_exp_f32","v_log_f32","v_rcp_f32","v_rsq_f32","v_sqrt_f32","v_sin_f32","v_cos_f32","v_rcp_iflag_f32")

def regs_of(tok):
    tok = tok.strip()
    tok = tok.lstrip('-')
    m = re.fullmatch(r"abs\((.*)\)", tok) or re.fullmatch(r"\|(.*)\|", tok)
    if m: tok = m.group(1)
    m = re.fullmatch(r"([vas])(\d+)", tok)
    if m: return {(m.group(1), int(m.group(2)))}
    m = re.fullmatch(r"([vas])\[(\d+):(\d+)\]", tok)
    if m: return {(m.group(1), i) for i in range(int(m.group(2)), int(m.group(3)) + 1)}
    if tok in ("vcc",): return {("s", "vcc")}
    if tok in ("exec",): return {("s", "exec")}
    if tok == "m0": return {("s", "m0")}
    return set()

class Ins:
    def __init__(self, text):
        self.text = text
        t = text.split(";")[0].strip()
        self.label = t.endswith(":")
        self.directive = t.startswith(".")
        self.w = set(); self.r = set(); self.srcc = set(); self.ab = set()
        self.mn = ""
        self.kind = "other"
        if self.label or self.directive or not t:
            self.kind = "none"; return
        parts = t.split(None, 1)
        mn = parts[0]; self.mn = mn
        rest = parts[1] if len(parts) > 1 else ""
        ops = []; depth = 0; cur = ""
        for ch in rest:
            if ch in "[(": depth += 1
            if ch in "])": depth -= 1
            if ch == "," and depth == 0: ops.append(cur.strip()); cur = ""
            else: cur += ch
        if cur.strip(): ops.append(cur.strip())
        if ops:
            last = ops[-1].split()
            self.mods = last[1:]; ops[-1] = last[0] if last else ""
        else: self.mods = []
        self.ops = ops
        R = [regs_of(o) for o in ops]
        base = re.sub(r"_(e32|e64|dpp|sdwa)$", "", mn)
        self.base = base
        self.dpp = mn.endswith("_dpp")
        if mn.startswith("v_mfma"):
            self.kind = "mfma"
            self.w = R[0]; self.ab = R[1] | R[2]; self.srcc = R[3]; self.r = self.ab | self.srcc
            self.passes = 8 if "32x32x16" in mn else 4 if "16x16x32" in mn else 2 if "4x4x4" in mn else None
            assert self.passes, mn
        elif mn.startswith("v_"):
            self.kind = "valu"
            self.trans = base in TRANS
            if base in ("v_swap_b32", "v_permlane32_swap_b32", "v_permlane16_swap_b32"):
                self.w = R[0] | R[1]; self.r = R[0] | R[1]
            elif base.startswith("v_cmp"):
                self.w = R[0]; self.r = set().union(*R[1:])
                if base.startswith("v_cmpx"): self.w |= {("s", "exec")}
            elif base in ("v_add_co_u32", "v_sub_co_u32", "v_addc_co_u32", "v_subb_co_u32", "v_mad_u64_u32"):
                self.w = R[0] | R[1]; self.r = set().union(*R[2:])
            else:
                self.w = R[0]; self.r = set().union(*R[1:]) if len(R) > 1 else set()
                if base in ("v_fmac_f32", "v_dot2c_f32_bf16", "v_pk_fmac_f16", "v_writelane_b32") or self.dpp: self.r |= R[0]
            self.dot = base.startswith("v_dot")
        elif mn.startswith("buffer_") or mn.startswith("global_"):
            self.kind = "vmem"
            self.lds = "lds" in self.mods or "_lds_" in mn
            if mn in ("buffer_wbl2", "buffer_inv"): return
            if "store" in mn or ("atomic" in mn):
                self.r = set().union(*R)
                self.store = True
                self.data = R[0] if mn.startswith("buffer_") else R[1]
                self.wide = ("x3" in mn or "x4" in mn)
                if "atomic" in mn and "sc0" in self.mods: self.w = R[0]
            elif self.lds:
                self.r = set().union(*R) | {("s", "m0")}
            else:
                self.w = R[0]; self.r = set().union(*R[1:])
        elif mn.startswith("ds_"):
            self.kind = "ds"
            if "write" in mn or mn.startswith("ds_add"): self.r = set().union(*R)
            else: self.w = R[0]; self.r = set().union(*R[1:])
        elif mn.startswith("s_"):
            self.kind = "salu"
            if mn.startswith("s_nop"): self.nop = int(ops[0], 0) + 1
            elif mn.startswith(("s_cmp", "s_waitcnt", "s_barrier", "s_branch", "s_cbranch", "s_endpgm", "s_setprio", "s_sleep")):
                self.r = set().union(*R) if R else set()
            else:
                self.w = R[0] if R else set(); self.r = set().union(*R[1:]) if len(R) > 1 else set()
                if "saveexec" in mn: self.w |= {("s", "exec")}

def need(p, c):
    n = 0
    isv = lambda S: {x for x in S if x[0] in "va"}
    iss = lambda S: {x for x in S if x[0] == "s"}
    if p.kind == "valu":
        pw = isv(p.w); ps = iss(p.w)
        if c.kind == "mfma" and pw & c.r: n = max(n, 3 if getattr(p, "dot", False) else 2)
        if c.kind == "mfma" and ("s", "exec") in ps: n = max(n, 4)
        if c.kind == "valu":
            if c.dpp and pw & c.r: n = max(n, 2)
            if c.dpp and ("s", "exec") in ps: n = max(n, 5)
            if c.base.startswith("v_permlane") and pw & c.r: n = max(n, 2)
            if c.base in ("v_readlane_b32", "v_readfirstlane_b32") and pw & c.r: n = max(n, 1)
            if p.trans and not c.trans and pw & c.r: n = max(n, 1)
            if p.trans and c.trans and pw & c.r: n = max(n, 1)
            if ps & c.r: n = max(n, 4 if c.base in ("v_readlane_b32", "v_writelane_b32") else 2)
            if getattr(p, "dot", False) and (pw & (c.r | c.w)) and not (c.base == p.base): n = max(n, 3)
            if p.mn.endswith("_sdwa") and pw & (c.r | c.w): n = max(n, 1)
        if c.kind in ("vmem", "ds") and p.trans and pw & c.r: n = max(n, 1)
        if c.kind == "vmem" and ps & c.r: n = max(n, 5)
        if c.kind == "salu" and ps & c.r: n = max(n, 1)
    if p.kind == "mfma":
        far = {2: 5, 4: 8, 8: 12}[p.passes]
        if c.kind == "mfma":
            if p.w & c.ab: n = max(n, far)
            if p.w & c.srcc:
                if p.w == c.srcc and p.passes == c.passes: n = max(n, 2 if p.passes == 2 else 0)
                else: n = max(n, {2: 4, 4: 6, 8: 10}[p.passes])
            elif p.w & c.w: n = max(n, far)
        elif c.kind in ("valu", "vmem", "ds"):
            if p.w & (c.r | c.w): n = max(n, far)
            if c.kind == "valu" and p.srcc & c.w: n = max(n, {2: 1, 4: 3, 8: 7}[p.passes])
    if p.kind == "vmem" and getattr(p, "store", False) and p.wide:
        if p.data & c.w: n = max(n, 2)
    if p.kind == "ds" and ("b128" in p.mn or "b96" in p.mn) and "write" in p.mn:
        pass
    if p.kind == "salu" and ("s", "m0") in p.w:
        if c.kind == "vmem" and getattr(c, "lds", False): n = max(n, 1)
    return n

def pad_hazards(lines):
    out = []
    hist = []
    for ln in lines:
        c = Ins(ln)
        if c.kind == "none":
            out.append(ln); continue
        req = 0
        d = 0
        for p in reversed(hist):
            k = need(p, c)
            if k - d > req: req = k - d
            d += getattr(p, "nop", 1)
            if d > 20: break
        while req > 0:
            k = min(req, 16)
            nop = "    s_nop %d" % (k - 1)
            out.append(nop); hist.append(Ins(nop)); req -= k
        out.append(ln); hist.append(c)
        if len(hist) > 64: hist = hist[-32:]
    return out

class Kern:
    def __init__(self, name, grid, block, lds, nv, na=0, ns=96, sid=0):
        self.sid = sid
        self.name, self.grid, self.block, self.lds = name, grid, block, lds
        self.nv, self.na, self.ns = nv, na, ns
        self.L = []
        self.idx = None
        self.nst = 0
    def stamp(self, i):
        if STAMPS:
            op = "s_memtime" if os.environ.get("STAMPS") == "2" else "s_memrealtime"
            self.e(f"{op} s[{64+2*i}:{65+2*i}]")
    def end(self):
        if STAMPS:
            from layout import STAMP
            self.e("s_waitcnt vmcnt(0)")
            self.stamp(15)
            self.e(f"""s_mov_b64 exec, 1
            s_lshl_b32 s62, s2, 3
            s_add_u32 s62, s62, s3
            s_lshl_b32 s62, s62, 7
            s_add_u32 s62, s62, s63
            v_mov_b32 v0, 0
            s_waitcnt lgkmcnt(0)""")
            for i in range(8):
                for j in range(4): self.e(f"v_mov_b32 v{4+j}, s{64+4*i+j}")
                self.e(f"buffer_store_dwordx4 v[4:7], v0, s[8:11], s62 offen offset:{16*i}")
        self.e("s_endpgm")
    def zero_stamps(self):
        if STAMPS:
            from layout import STAMP
            self.e(f"s_mov_b32 s63, {STAMP + self.sid*256*8*128}")
            for i in range(16): self.e(f"s_mov_b64 s[{64+2*i}:{65+2*i}], 0")
    def e(self, s):
        for ln in s.split("\n"):
            ln = ln.strip()
            if not ln: continue
            self.L.append(ln if (ln.endswith(":") or ln.startswith(".")) else "    " + ln)
    def cap(self, fn):
        save = self.L; self.L = []
        fn()
        out = self.L; self.L = save
        return out
    def weave(self, main, fillers, every, start=0):
        fillers = list(fillers)
        n = 0; nxt = start
        for ln in main:
            while fillers and n >= nxt:
                fillers.pop(0)(); nxt += every
            self.L.append(ln); n += 1
        for f in fillers: f()
    def text(self):
        body = pad_hazards(self.L)
        return (f".globl {self.name}\n.p2align 8\n.type {self.name},@function\n{self.name}:\n" + "\n".join(body) + "\n")
    def desc(self):
        acc = (self.nv + 3) // 4 * 4
        tot = acc + self.na if self.na else self.nv
        return (f".p2align 6\n.amdhsa_kernel {self.name}\n  .amdhsa_next_free_vgpr {tot}\n  .amdhsa_next_free_sgpr {self.ns}\n"
                f"  .amdhsa_accum_offset {acc}\n  .amdhsa_group_segment_fixed_size 0\n  .amdhsa_kernarg_size 88\n"
                f"  .amdhsa_user_sgpr_count 2\n  .amdhsa_user_sgpr_kernarg_segment_ptr 1\n  .amdhsa_system_sgpr_workgroup_id_x 1\n"
                f"  .amdhsa_float_denorm_mode_32 3\n"
                f".end_amdhsa_kernel\n")
    def launch(self):
        return f"; @launch kernel={self.name} grid=({self.grid},1,1) block=({self.block},1,1) lds={self.lds}\n"

def v(i, n=1): return f"v{i}" if n == 1 else f"v[{i}:{i+n-1}]"
def a(i, n=1): return f"a{i}" if n == 1 else f"a[{i}:{i+n-1}]"
def s(i, n=1): return f"s{i}" if n == 1 else f"s[{i}:{i+n-1}]"
import struct
def fhex(x): return "0x%08x" % struct.unpack("<I", struct.pack("<f", x))[0]

def module(kernels, order, header=""):
    out = header
    for k in order: out += k.launch()
    out += '.amdgcn_target "amdgcn-amd-amdhsa--gfx950"\n.text\n'
    out += "code_start:\n"
    for k in kernels: out += k.text()
    out += "code_end:\n"
    out += '.section .rodata,"a"\n'
    for k in kernels: out += k.desc()
    return out
```

```python
from asmlib import *
from layout import *
import math
SRD3 = "0x00020000"
SC = os.environ.get("SC", "sc1")
CPF = os.environ.get("CPF", "1") == "1"

def srd(k, r, nbytes):
    k.e(f"s_mov_b32 s{r+2}, {nbytes}\ns_mov_b32 s{r+3}, {SRD3}")

def code_prefetch(k, P, vd, nw):
    if not CPF: return
    nwg = 8//nw
    k.e(f"""
    s_cmp_ge_u32 s2, {8*nwg}
    s_cbranch_scc1 {P}_nocp
    s_getpc_b64 s[60:61]
    {P}_pc:
    s_lshr_b32 s62, s2, 3
    s_mul_i32 s62, s62, {nw*8192}
    v_lshl_add_u32 {v(vd)}, v0, 7, s62
    v_min_u32 {v(vd)}, code_end-code_start-4, {v(vd)}
    s_sub_u32 s60, s60, {P}_pc-code_start
    s_subb_u32 s61, s61, 0
    v_mov_b32 {v(vd+1)}, s61
    v_add_co_u32 {v(vd)}, vcc, s60, {v(vd)}
    v_addc_co_u32 {v(vd+1)}, vcc, 0, {v(vd+1)}, vcc
    global_load_dword {v(vd+2)}, {v(vd,2)}, off
    {P}_nocp:
    """)

class VM:
    def __init__(self, k): self.k = k; self.n = 0; self.tag = {}
    def op(self, text, tag=None):
        self.k.e(text); self.n += 1
        if tag is not None: self.tag[tag] = self.n
    def wait(self, tag):
        c = self.n - self.tag[tag]
        assert c <= 63, c
        self.k.e(f"s_waitcnt vmcnt({c})")

def fgen(k, sc0, sd0, th, vi, vg, T, FR, hook=None):
    KA, SM, c, jj, ph, amp, x = T+16, T+18, T+19, T+20, T+21, T+22, T+17
    hk = hook or (lambda: None)
    k.e(f"""
    v_add_u32 {v(c)}, s{sc0}, {v(vi)}
    v_add_u32 {v(c)}, {16*th}, {v(c)}
    v_lshrrev_b32 {v(jj)}, 1, {v(c)}
    v_and_b32 {v(ph)}, 1, {v(c)}
    v_cvt_f32_u32 {v(ph)}, {v(ph)}
    v_mul_f32 {v(ph)}, {fhex(0.25)}, {v(ph)}
    v_mov_b32 {v(amp)}, {fhex(math.sqrt(2/640))}
    v_mov_b32 {v(x)}, {fhex(math.sqrt(1/640))}
    v_cmp_gt_u32 vcc, 2, {v(c)}
    v_cndmask_b32 {v(amp)}, {v(amp)}, {v(x)}, vcc
    v_cndmask_b32 {v(ph)}, {v(ph)}, 0, vcc
    v_mov_b32 {v(x)}, 320
    v_cmp_eq_u32 vcc, 0, {v(c)}
    v_cndmask_b32 {v(jj)}, {v(jj)}, {v(x)}, vcc
    v_and_b32 {v(SM)}, 1, {v(jj)}
    v_mul_u32_u24 {v(SM)}, 0x8000, {v(SM)}
    v_lshl_or_b32 {v(SM)}, {v(SM)}, 16, {v(SM)}
    v_lshl_add_u32 {v(x)}, {v(vg)}, 3, s{sd0}
    v_mul_u32_u24 {v(x)}, {v(x)}, {v(jj)}
    v_cvt_f32_u32 {v(x)}, {v(x)}
    v_cvt_f32_u32 {v(jj)}, {v(jj)}
    s_mov_b32 s42, {fhex(1/640)}
    s_mov_b32 s43, {fhex(-640.0)}
    v_mul_f32 {v(c)}, s42, {v(x)}
    v_floor_f32 {v(c)}, {v(c)}
    v_fma_f32 {v(x)}, {v(c)}, s43, {v(x)}
    s_mov_b32 s43, {fhex(32.0)}
    v_mul_f32 {v(KA)}, {fhex(0.05)}, {v(jj)}
    v_cos_f32 {v(KA)}, {v(KA)}
    v_fma_f32 {v(c)}, {v(jj)}, s43, {v(x)}
    v_add_f32 {v(KA)}, {v(KA)}, {v(KA)}
    """)
    hk()
    for e in range(8):
        k.e(f"""
        v_fma_f32 {v(T+e)}, {v(x)}, s42, {v(ph)}
        v_fma_f32 {v(T+8+e)}, {v(c)}, s42, {v(ph)}
        v_cos_f32 {v(T+e)}, {v(T+e)}
        v_cos_f32 {v(T+8+e)}, {v(T+8+e)}
        """)
        if e < 7: k.e(f"v_add_f32 {v(x)}, {v(x)}, {v(jj)}\nv_add_f32 {v(c)}, {v(c)}, {v(jj)}")
        if e % 2: hk()
    for e in range(0, 16, 2):
        k.e(f"v_pk_mul_f32 {v(T+e,2)}, {v(T+e,2)}, {v(amp,2)} op_sel_hi:[1,0]")
    for q in range(10):
        src = T if q % 2 == 0 else T+8
        oth = T+8 if q % 2 == 0 else T
        if q >= 2:
            for e in range(0, 8, 2):
                k.e(f"v_pk_fma_f32 {v(src+e,2)}, {v(oth+e,2)}, {v(KA,2)}, {v(src+e,2)} op_sel_hi:[1,0,1] neg_lo:[0,0,1] neg_hi:[0,0,1]")
        d0, d1 = FR+(q*2+th)*4, FR+((q+10)*2+th)*4
        for p in range(4): k.e(f"v_cvt_pk_bf16_f32 {v(d0+p)}, {v(src+2*p)}, {v(src+2*p+1)}")
        for p in range(4): k.e(f"v_xor_b32 {v(d1+p)}, {v(SM)}, {v(d0+p)}")
        hk()

def rowdft_loop(k, nun, FR, ACC, RING, NR, rd, nrd, swap, sync):
    items = [(q, u) for q in range(20) for u in range(nun)]
    RA = NR-2
    issued = 0
    def issue(i):
        q, u = items[i]
        if u == 0 and q % 4 == 0: sync(q//4)
        rd(q, u, RING+(i % NR)*4)
    for i in range(RA): issue(i)
    for i, (q, u) in enumerate(items):
        ahead = min(RA, len(items)-i) - 1
        k.e(f"s_waitcnt lgkmcnt({min(15, ahead*nrd)})")
        for th in range(2):
            A = v(FR+(q*2+th)*4, 4); B = v(RING+(i % NR)*4, 4); C = v(ACC+(u*2+th)*4, 4)
            if swap: A, B = B, A
            k.e(f"v_mfma_f32_16x16x32_bf16 {C}, {A}, {B}, {C if q else 0}")
            if th == 0 and i+RA < len(items): issue(i+RA)

def rows_rd(k, va):
    def rd(q, u, reg):
        off = u*20480 + (q >> 1)*2048
        hi = off >= 61440
        if hi: off -= 61440
        k.e(f"ds_read_b128 {v(reg,4)}, {v(va+(q&1)+2*hi)} offset:{off}")
    return rd

def rows_addr(k, va, vi, vg):
    k.e(f"""
    v_and_b32 {v(va)}, 7, {v(vi)}
    v_xor_b32 {v(va)}, {v(va)}, {v(vg)}
    v_lshlrev_b32 {v(va)}, 4, {v(va)}
    v_lshl_add_u32 {v(va)}, {v(vi)}, 7, {v(va)}
    v_xor_b32 {v(va+1)}, 64, {v(va)}
    v_add_u32 {v(va+2)}, 61440, {v(va)}
    v_add_u32 {v(va+3)}, 61440, {v(va+1)}
    """)

def build_k1():
    k = Kern("k1_kernel", 256, 512, 102400, 256, sid=0)
    FR, ACC, RING, NR = 16, 176, 216, 8
    k.zero_stamps(); k.stamp(0)
    k.e(f"""
    s_cmp_ge_u32 s2, 256
    s_cbranch_scc1 K1_end
    s_load_dwordx2 s[16:17], s[0:1], 0
    s_load_dwordx2 s[32:33], s[0:1], 32
    s_load_dwordx2 s[8:9], s[0:1], 80
    s_load_dwordx2 s[24:25], s[0:1], 8
    s_load_dwordx2 s[28:29], s[0:1], 16
    s_load_dwordx2 s[20:21], s[0:1], 48""")
    code_prefetch(k, "K1", 252, 8)
    k.e(f"""
    v_lshrrev_b32 v1, 6, v0
    v_and_b32 v0, 63, v0
    v_readfirstlane_b32 s3, v1
    v_and_b32 v1, 15, v0
    v_lshrrev_b32 v2, 4, v0
    v_lshlrev_b32 v3, 4, v0
    s_and_b32 s4, s2, 7
    s_lshr_b32 s5, s2, 3
    s_lshl_b32 s4, s4, 5
    s_add_u32 s4, s4, s5
    s_mul_i32 s7, s4, 13108
    s_lshr_b32 s7, s7, 16
    s_mul_i32 s6, s7, 5
    s_sub_u32 s6, s4, s6
    """)
    srd(k, 8, WSBYTES); srd(k, 16, XSZ); srd(k, 20, 1536*640*2); srd(k, 24, 2048*321*2); srd(k, 28, 2048*321*2); srd(k, 32, 640*1536*2)
    k.e(f"""
    s_cmp_gt_u32 s3, 3
    s_cbranch_scc1 K1_load
    s_cmp_ge_u32 s7, 50
    s_cbranch_scc1 K1_end
    s_lshl_b32 s45, s6, 7
    s_lshl_b32 s44, s3, 5
    s_add_u32 s44, s44, s45
    """)
    fgen(k, 44, 45, 0, 1, 2, RING, FR)
    fgen(k, 44, 45, 1, 1, 2, RING, FR)
    k.e("s_waitcnt lgkmcnt(0)")
    k.stamp(1)
    def sync(ch):
        k.e("s_barrier")
        if ch in (0, 1, 4): k.stamp(2+ch)
    k.e("s_cmp_ge_u32 s7, 26\ns_cbranch_scc1 K1_w1")
    rows_addr(k, 4, 1, 2)
    rowdft_loop(k, 5, FR, ACC, RING, NR, rows_rd(k, 4), 1, False, sync)
    k.stamp(7)
    k.e(f"""
    s_lshl_b32 s46, s44, 12
    s_mul_i32 s47, s7, {5*128}
    s_add_u32 s46, s46, s47
    s_add_u32 s46, s46, {XH0}
    s_add_u32 s47, s46, 65536
    v_lshlrev_b32 v8, 14, v2
    v_lshl_add_u32 v8, v1, 3, v8
    """)
    for u in range(5):
        if u == 3: k.e("s_cmp_eq_u32 s7, 25\ns_cbranch_scc1 K1_fin")
        for th in range(2):
            A = ACC+(u*2+th)*4; P = RING+(u*2+th)*2
            k.e(f"v_cvt_pk_bf16_f32 {v(P)}, {v(A)}, {v(A+1)}\nv_cvt_pk_bf16_f32 {v(P+1)}, {v(A+2)}, {v(A+3)}")
            k.e(f"buffer_store_dwordx2 {v(P,2)}, v8, s[8:11], s{46+th} offen offset:{128*u} {SC}")
    k.e("K1_fin:")
    k.end()
    k.e(f"""
    K1_w1:
    v_bfe_u32 v8, v0, 3, 1
    v_and_b32 v9, 1, v2
    v_lshl_add_u32 v8, v9, 1, v8
    v_lshlrev_b32 v8, 5, v8
    v_and_b32 v9, 3, v0
    v_lshl_add_u32 v8, v9, 3, v8
    v_bfe_u32 v9, v0, 2, 2
    v_lshl_add_u32 v8, v9, 7, v8
    v_lshl_add_u32 v4, v2, 10, v8
    v_xor_b32 v5, 32, v4
    v_xor_b32 v6, 64, v4
    v_xor_b32 v7, 0x60, v4
    v_add_u32 v8, 40960, v4
    v_add_u32 v9, 40960, v5
    v_add_u32 v10, 40960, v6
    v_add_u32 v11, 40960, v7
    """)
    def rd1(q, u, reg):
        b = 4+u+(4 if q >= 10 else 0)
        for hh in range(2):
            k.e(f"ds_read_b64_tr_b16 {v(reg+2*hh,2)}, {v(b)} offset:{(q%10)*4096+hh*512}")
    rowdft_loop(k, 4, FR, ACC, RING, NR, rd1, 2, False, sync)
    k.stamp(7)
    k.e(f"""
    s_sub_u32 s46, s7, 26
    s_lshl_b32 s46, s46, 2
    s_lshr_b32 s47, s44, 5
    s_mul_i32 s47, s47, 6144
    s_add_u32 s47, s47, {W1P}
    """)
    for u in range(4):
        A = ACC+u*8; P = RING+u*4
        k.e(f"""
        s_mul_i32 s48, s46, 43
        s_lshr_b32 s48, s48, 8
        s_mul_i32 s49, s48, {122880-6*1024}
        s_lshl_b32 s48, s46, 10
        s_add_u32 s48, s48, s49
        s_add_u32 s48, s48, s47
        s_add_u32 s46, s46, 1
        """)
        for p in range(4): k.e(f"v_cvt_pk_bf16_f32 {v(P+p)}, {v(A+2*p)}, {v(A+2*p+1)}")
        k.e(f"buffer_store_dwordx4 {v(P,4)}, v3, s[8:11], s48 offen {SC}")
    k.end()
    WR = 16
    k.e(f"""
    K1_load:
    s_sub_u32 s12, s3, 4
    v_lshrrev_b32 v4, 3, v0
    v_and_b32 v5, 7, v0
    s_lshr_b32 s52, s2, 2
    s_and_b32 s53, s2, 3
    s_and_b32 s54, s52, 1
    s_bfe_u32 s55, s52, 0x10001
    s_bfe_u32 s56, s52, 0x10002
    s_lshr_b32 s57, s52, 3
    s_lshl_b32 s58, s55, 5
    s_lshl_b32 s59, s54, 4
    s_add_u32 s58, s58, s59
    s_add_u32 s58, s58, s56
    s_lshl_b32 s59, s57, 8
    s_add_u32 s58, s58, s59
    s_mul_i32 s58, s58, 642
    s_mul_i32 s59, s53, 160
    s_add_u32 s58, s58, s59
    s_lshl_b32 s59, s12, 4
    s_add_u32 s36, s58, s59
    s_add_u32 s37, s36, {64*642}
    s_add_u32 s38, s36, {128*642}
    s_add_u32 s39, s36, {192*642}
    v_mul_u32_u24 v8, {2*642}, v4
    v_lshl_add_u32 v8, v5, 1, v8
    s_or_b32 s59, s53, s12
    s_cmp_eq_u32 s59, 0
    s_cselect_b32 s59, 640, 0
    v_mov_b32 v9, s59
    v_cmp_eq_u32 vcc, 0, v5
    v_cndmask_b32 v9, 0, v9, vcc
    v_add_u32 v9, v9, v8
    v_lshlrev_b32 v10, 7, v0
    s_lshl_b32 s40, s2, 13
    s_cmp_ge_u32 s7, 26
    s_cbranch_scc1 K1_load1
    v_xor_b32 v6, v5, v4
    v_lshlrev_b32 v6, 4, v6
    v_mul_u32_u24 v7, 1280, v4
    v_add_u32 v6, v6, v7
    s_mul_i32 s13, s7, {80*1280}
    s_and_b32 s14, s12, 1
    s_mul_i32 s15, s14, {8*1280}
    s_add_u32 s13, s13, s15
    s_lshr_b32 s15, s12, 1
    s_lshl_b32 s41, s15, 7
    s_add_u32 s13, s13, s41
    s_lshl_b32 s14, s14, 10
    s_lshl_b32 s15, s15, 11
    s_add_u32 s14, s14, s15
    s_mov_b32 s15, s6
    s_waitcnt lgkmcnt(0)
    """)
    k.stamp(1)
    def wload(vm, t):
        if t == 2: k.e("s_cmp_gt_u32 s12, 1\ns_cselect_b32 s26, 0, s26\ns_cselect_b32 s30, 0, s30")
        for r in range(4):
            va = "v9" if t == 0 else "v8"
            vm.op(f"buffer_load_ushort {v(WR+8*t+r)}, {va}, s[24:27], s{36+r} offen offset:{64*t}")
            vm.op(f"buffer_load_ushort {v(WR+8*t+4+r)}, {va}, s[28:31], s{36+r} offen offset:{64*t}")
        if t == 2:
            k.e("s_cmp_lg_u32 s12, 3\ns_cselect_b32 s22, 0, s22")
            vm.op("buffer_load_dword v12, v10, s[20:23], s40 offen")
    def sched(chunk):
        vm = VM(k)
        for ch in range(3): chunk(vm, ch)
        k.stamp(2)
        vm.wait(0); k.e("s_barrier")
        k.stamp(3)
        chunk(vm, 3); wload(vm, 0)
        vm.wait(1); k.e("s_barrier")
        chunk(vm, 4); wload(vm, 1)
        vm.wait(2); k.e("s_barrier")
        wload(vm, 2)
        vm.wait(3); k.e("s_barrier")
        vm.wait(4); k.e("s_barrier")
        k.stamp(4)
    def chunkx(vm, ch):
        k.e("s_lshl_b32 s41, s15, 8\ns_add_u32 s41, s41, s13\ns_add_u32 s15, s15, 1\ns_cmp_eq_u32 s15, 5\ns_cselect_b32 s15, 0, s15")
        for u in range(5):
            k.e(f"s_add_u32 m0, s14, {u*20480+ch*4096}")
            vm.op("buffer_load_dwordx4 v6, s[16:19], s41 offen lds", ch)
            if u < 4: k.e(f"s_add_u32 s41, s41, {16*1280}")
    sched(chunkx)
    ST, SL = 48, 68
    k.e(f"""
    s_mul_i32 s13, s6, 20480
    s_lshl_b32 s14, s12, 9
    s_add_u32 s13, s13, s14
    v_lshlrev_b32 v6, 7, v2
    v_lshl_add_u32 v6, v5, 4, v6
    v_bfe_u32 v7, v0, 3, 1
    v_lshl_add_u32 v6, v7, 11, v6
    v_add_u32 v6, s13, v6
    """)
    for i in range(5): k.e(f"ds_read_b128 {v(ST+4*i,4)}, v6 offset:{4096*i}")
    k.e("s_waitcnt lgkmcnt(0)")
    for i in range(20): k.e(f"v_lshlrev_b32 {v(SL+i)}, 16, {v(ST+i)}\nv_and_b32 {v(ST+i)}, 0xffff0000, {v(ST+i)}")
    for j in range(4): k.e(f"v_add_f32 {v(88+j)}, {v(ST+j)}, {v(ST+4+j)}")
    for i in range(8, 40): k.e(f"v_add_f32 {v(88+i%4)}, {v(88+i%4)}, {v(ST+i)}")
    red16 = lambda r: k.e(f"""
    v_add_f32_dpp {r}, {r}, {r} quad_perm:[1,0,3,2] row_mask:0xf bank_mask:0xf
    v_add_f32_dpp {r}, {r}, {r} quad_perm:[2,3,0,1] row_mask:0xf bank_mask:0xf
    v_add_f32_dpp {r}, {r}, {r} row_half_mirror row_mask:0xf bank_mask:0xf
    v_add_f32_dpp {r}, {r}, {r} row_mirror row_mask:0xf bank_mask:0xf""")
    k.e("v_add_f32 v88, v88, v89\nv_add_f32 v90, v90, v91\nv_add_f32 v88, v88, v90")
    red16("v88")
    k.e(f"v_mul_f32 v88, {fhex(1/640)}, v88")
    for i in range(40): k.e(f"v_sub_f32 {v(ST+i)}, {v(ST+i)}, v88")
    for j in range(4): k.e(f"v_mul_f32 {v(90+j)}, {v(ST+j)}, {v(ST+j)}")
    for i in range(4, 40): k.e(f"v_fmac_f32 {v(90+i%4)}, {v(ST+i)}, {v(ST+i)}")
    k.e("v_add_f32 v90, v90, v91\nv_add_f32 v92, v92, v93\nv_add_f32 v90, v90, v92")
    red16("v90")
    k.e(f"""
    v_cvt_f64_f32 v[92:93], v90
    s_lshr_b32 s13, s4, 1
    s_lshl_b32 s13, s13, 8
    s_and_b32 s14, s4, 1
    s_lshl_b32 s14, s14, 6
    s_add_u32 s13, s13, s14
    s_lshl_b32 s14, s12, 4
    s_add_u32 s13, s13, s14
    s_add_u32 s13, s13, {SS0}
    v_and_b32 v7, 1, v2
    v_lshlrev_b32 v7, 7, v7
    v_lshrrev_b32 v6, 1, v2
    v_lshl_add_u32 v7, v6, 3, v7
    s_cmp_ge_u32 s4, 128
    s_cbranch_scc1 K1_wfmt
    v_cmp_eq_u32 vcc, 0, v1
    s_and_saveexec_b64 s[50:51], vcc
    buffer_store_dwordx2 v[92:93], v7, s[8:11], s13 offen
    s_mov_b64 exec, s[50:51]
    s_branch K1_wfmt
    K1_load1:
    s_cmp_ge_u32 s7, 50
    s_cbranch_scc1 K1_load2
    v_and_b32 v6, 2, v4
    v_xor_b32 v6, v6, v5
    v_lshlrev_b32 v6, 4, v6
    v_mul_u32_u24 v7, 3072, v4
    v_add_u32 v6, v6, v7
    v_xor_b32 v7, 64, v6
    s_sub_u32 s13, s7, 26
    s_lshl_b32 s13, s13, 7
    s_mul_i32 s14, s12, {32*3072}
    s_add_u32 s13, s13, s14
    s_lshl_b32 s14, s12, 12
    s_mov_b32 s15, s6
    s_waitcnt lgkmcnt(0)
    """)
    k.stamp(1)
    def chunkw(vm, ch):
        k.e(f"s_mul_i32 s41, s15, {128*3072}\ns_add_u32 s41, s41, s13\ns_add_u32 s15, s15, 1\ns_cmp_eq_u32 s15, 5\ns_cselect_b32 s15, 0, s15")
        for x in range(4):
            k.e(f"s_add_u32 m0, s14, {ch*16384+x*1024}")
            vm.op(f"buffer_load_dwordx4 v{6+(x&1)}, s[32:35], s41 offen lds", ch)
            if x < 3: k.e(f"s_add_u32 s41, s41, {8*3072}")
    sched(chunkw)
    k.e(f"""
    s_branch K1_wfmt
    K1_load2:
    s_waitcnt lgkmcnt(0)
    """)
    vm = VM(k)
    for t in range(3): wload(vm, t)
    k.e(f"""
    s_sub_u32 s13, s4, 250
    s_lshl_b32 s13, s13, 2
    s_add_u32 s13, s13, s12
    s_lshl_b32 s13, s13, 10
    s_add_u32 s13, s13, {SS2}
    v_mov_b32 v48, 0
    v_mov_b32 v49, 0
    v_mov_b32 v50, 0
    v_mov_b32 v51, 0
    buffer_store_dwordx4 v[48:51], v3, s[8:11], s13 offen
    K1_wfmt:
    s_mul_i32 s49, s53, {80*8192}
    s_lshl_b32 s58, s56, 12
    s_add_u32 s49, s49, s58
    s_lshl_b32 s58, s55, 11
    s_add_u32 s49, s49, s58
    s_lshl_b32 s58, s57, 8
    s_add_u32 s49, s49, s58
    s_lshl_b32 s58, s54, 7
    s_add_u32 s49, s49, s58
    s_lshl_b32 s58, s12, 16
    s_add_u32 s49, s49, s58
    s_add_u32 s49, s49, {WP}
    v_lshlrev_b32 v6, 13, v5
    v_lshl_add_u32 v6, v4, 4, v6
    s_waitcnt vmcnt(1)
    """)
    k.stamp(8)
    for t in range(3):
        if t == 2: k.e("s_cmp_gt_u32 s12, 1\ns_cbranch_scc1 K1_fin2")
        for r in range(4):
            k.e(f"v_lshl_or_b32 {v(WR+8*t+r)}, {v(WR+8*t+4+r)}, 16, {v(WR+8*t+r)}")
        k.e(f"buffer_store_dwordx4 {v(WR+8*t,4)}, v6, s[8:11], s49 offen\ns_add_u32 s49, s49, {4*65536}")
    k.e("K1_fin2:")
    k.end()
    k.e("K1_end:\ns_endpgm")
    return k
```

```python
from asmlib import *
from layout import *
from k1 import srd, fgen, rowdft_loop, rows_rd, rows_addr, VM, SC, code_prefetch
import math
WEV = int(os.environ.get('WEV', '5'))

def column(k, P, PF):
    XH, XL = 8, 24
    RS = 40
    WH, WL = 56, 72
    MF = 88
    C1, S1, C2, S2 = 120, 128, 136, 152
    ACC = 168
    PK = 200
    TM = 216
    AO1, AO4 = 0, 32
    mi = lambda ah, q, part: ((ah*2+q)*2+part)*4
    k.e(f"""
    s_and_b32 s4, s2, 7
    s_lshr_b32 s5, s2, 3
    s_and_b32 s6, s4, 1
    s_mul_i32 s6, s6, {8*122880}
    s_lshl_b32 s7, s5, 2
    s_add_u32 s7, s7, s3
    s_mul_i32 s7, s7, 12288
    s_add_u32 s6, s6, s7
    s_add_u32 s6, s6, {W1P}
    s_mul_i32 s4, s4, 20
    s_add_u32 s4, s4, s5
    s_lshl_b32 s5, s4, 14
    s_lshl_b32 s7, s3, 6
    s_add_u32 s7, s7, s5
    s_add_u32 s12, s7, s48
    s_add_u32 s13, s12, 4096
    s_add_u32 s14, s12, 8192
    s_add_u32 s15, s12, 12288
    s_add_u32 s28, s7, s49
    s_add_u32 s29, s28, 4096
    s_add_u32 s30, s28, 8192
    s_add_u32 s31, s28, 12288
    s_lshl_b32 s16, s3, 10
    s_add_u32 s16, s16, s50
    s_lshl_b32 s18, s3, 12
    s_add_u32 s18, s18, s5
    s_add_u32 s18, s18, {WP}
    s_lshl_b32 s19, s3, 3
    v_and_b32 v4, 1, v1
    v_lshrrev_b32 v5, 1, v1
    v_lshlrev_b32 v7, 10, v2
    v_lshl_add_u32 v6, v1, 2, v7
    """)
    LM, LMN, AR = TM+1, TM+2, TM+3
    k.e(f"""
    s_mov_b32 s20, 0x80008000
    v_mul_u32_u24 {v(LM)}, 0x8000, v4
    v_lshl_or_b32 {v(LM)}, {v(LM)}, 16, {v(LM)}
    v_xor_b32 {v(LMN)}, s20, {v(LM)}
    v_cvt_f32_u32 {v(TM+4)}, v1
    v_cvt_f32_u32 {v(TM+5)}, v2
    """)
    fi, fg = TM+4, TM+5
    BR, BI = ACC, ACC+4
    cs = ACC+8
    def matrix(step_expr, base_expr, rule, dst, acc):
        st, an = TM+6, TM+7
        k.e(step_expr.format(d=v(st), i=v(fi), g=v(fg)))
        k.e(base_expr.format(d=v(an), i=v(fi), g=v(fg), st=v(st)))
        for rr in range(4):
            k.e(f"v_cos_f32 {v(cs+2*rr)}, {v(an)}\nv_sin_f32 {v(cs+2*rr+1)}, {v(an)}")
            if rr < 3: k.e(f"v_add_f32 {v(an)}, {v(an)}, {v(st)}")
        br, bi = (BR, BI) if acc else (dst+mi(0,0,0), dst+mi(0,0,1))
        for rr in range(4):
            k.e(f"v_cvt_pk_bf16_f32 {v(br+rr)}, {v(cs+2*rr)}, {v(cs+2*rr+1)}")
            k.e(f"v_cvt_pk_bf16_f32 {v(bi+rr)}, -{v(cs+2*rr+1)}, {v(cs+2*rr)}")
        tmp = [ACC+16+x for x in range(8)]; ti = 0
        for ah in range(2):
            for q in range(2):
                for part in range(2):
                    for rr in range(4):
                        rot, csign, lsign = rule(ah, q, rr)
                        sp = part
                        if rot:
                            sp = 1 - part
                            if part == 1: csign = -csign
                        src = (br if sp == 0 else bi) + rr
                        d = dst + mi(ah, q, part) + rr
                        mask = None if (csign == 1 and not lsign) else "s20" if not lsign else v(LM) if csign == 1 else v(LMN)
                        if acc:
                            if mask is None: k.e(f"v_accvgpr_write_b32 {a(d)}, {v(src)}")
                            else:
                                t = tmp[ti % 8]; ti += 1
                                k.e(f"v_xor_b32 {v(t)}, {mask}, {v(src)}\nv_accvgpr_write_b32 {a(d)}, {v(t)}")
                        else:
                            if d == src: continue
                            if mask is None: k.e(f"v_mov_b32 {v(d)}, {v(src)}")
                            else: k.e(f"v_xor_b32 {v(d)}, {mask}, {v(src)}")
    sg = lambda rr: -1 if rr & 1 else 1
    matrix("v_mul_f32 {d}, "+fhex(1/32)+", {i}", "v_mul_f32 {d}, 4.0, {g}\nv_mul_f32 {d}, {d}, {st}",
           lambda ah, q, rr: (False, sg(rr) if ah else 1, q == 1), MF, False)
    matrix("v_add_f32 {d}, 0.5, {i}\nv_mul_f32 {d}, "+fhex(1/32)+", {d}", "v_mul_f32 {d}, 4.0, {g}\nv_mul_f32 {d}, {d}, {st}",
           lambda ah, q, rr: (q == 1, sg(rr) if ah else 1, q == 1), AO1, True)
    n2b, kf = TM+6, TM+7
    W1A, R1A, R1B, W2A, W2B, R2A, R2B, DCM = TM+9, TM+10, TM+11, TM+12, TM+13, TM+14, TM+15, TM+16
    t0, t1, t2 = TM+6, TM+7, TM+8
    RWA, RRA, EPS = TM+17, 7, TM+20
    k.stamp(1)
    k.e("s_waitcnt lgkmcnt(0)")
    k.stamp(2)
    loads = []
    for x in range(4):
        loads.append(lambda x=x: k.e(f"buffer_load_dwordx4 {v(RS+4*x,4)}, v3, s[8:11], s16 offen\ns_add_u32 s16, s16, 4096"))
    for x in range(4):
        for rr in range(4):
            loads.append(lambda x=x, rr=rr: k.e(f"buffer_load_dword {v(XH+x*4+rr)}, v6, s[8:11], s{12+x} offen offset:{256*rr}"))
    for x in range(4):
        loads.append(lambda x=x: k.e(f"buffer_load_dwordx4 {v(WH+4*x,4)}, v3, s[8:11], s18 offen offset:{1024*x}"))
    NPF = 2 if PF else 0
    def part1():
        n2b, kf = TM+6, TM+7
        k.e(f"v_lshl_add_u32 {v(n2b)}, v2, 1, s19\nv_cvt_f32_u32 {v(n2b)}, {v(n2b)}")
        for par in range(2):
            for nt in range(2):
                b = (par*2+nt)*2
                k.e(f"v_add_f32 {v(kf)}, {fhex(16*nt+par*0.5)}, {v(fi)}\nv_mul_f32 {v(kf)}, {fhex(1/1024)}, {v(kf)}\nv_mul_f32 {v(AR)}, {v(kf)}, {v(n2b)}")
                for r in range(2):
                    k.e(f"v_cos_f32 {v(C1+b+r)}, {v(AR)}\nv_sin_f32 {v(S1+b+r)}, {v(AR)}")
                    if r < 1: k.e(f"v_add_f32 {v(AR)}, {v(AR)}, {v(kf)}")
        W1A, R1A, R1B, W2A, W2B, R2A, R2B, DCM = TM+9, TM+10, TM+11, TM+12, TM+13, TM+14, TM+15, TM+16
        t0, t1, t2 = TM+6, TM+7, TM+8
        k.e(f"""
        v_and_b32 {v(t2)}, 7, v1
        v_lshrrev_b32 {v(t0)}, 1, v2
        s_lshl_b32 s21, s3, 1
        v_add_u32 {v(t0)}, s21, {v(t0)}
        v_xor_b32 {v(t0)}, {v(t0)}, {v(t2)}
        v_lshlrev_b32 {v(t0)}, 4, {v(t0)}
        v_lshl_add_u32 {v(t0)}, v1, 7, {v(t0)}
        v_and_b32 {v(t1)}, 1, v2
        v_lshl_add_u32 {v(W1A)}, {v(t1)}, 3, {v(t0)}
        v_xor_b32 {v(t0)}, v2, {v(t2)}
        v_lshlrev_b32 {v(t0)}, 4, {v(t0)}
        v_lshl_add_u32 {v(t1)}, v1, 7, {v(t0)}
        s_lshl_b32 s21, s3, 12
        v_add_u32 {v(R1A)}, s21, {v(t1)}
        v_xor_b32 {v(R1B)}, 64, {v(R1A)}
        s_and_b32 s21, s3, 1
        s_lshl_b32 s21, s21, 13
        s_lshr_b32 s22, s3, 1
        s_lshl_b32 s22, s22, 7
        s_add_u32 s21, s21, s22
        s_add_u32 s21, s21, 16384
        v_lshl_add_u32 {v(t1)}, v1, 8, {v(t0)}
        v_add_u32 {v(W2A)}, s21, {v(t1)}
        v_xor_b32 {v(W2B)}, 64, {v(W2A)}
        v_xor_b32 {v(t0)}, v2, v5
        v_lshlrev_b32 {v(t0)}, 4, {v(t0)}
        v_lshl_add_u32 {v(t1)}, v1, 7, {v(t0)}
        s_lshl_b32 s21, s3, 11
        s_add_u32 s21, s21, 16384
        v_add_u32 {v(R2A)}, s21, {v(t1)}
        v_xor_b32 {v(R2B)}, 64, {v(R2A)}
        v_lshlrev_b32 {v(RWA)}, 6, {v(t2)}
        v_lshrrev_b32 {v(t0)}, 3, v1
        v_lshl_add_u32 {v(RWA)}, {v(t0)}, 4, {v(RWA)}
        v_lshl_add_u32 {v(RWA)}, v2, 2, {v(RWA)}
        s_lshl_b32 s21, s3, 9
        v_add_u32 {v(RWA)}, s21, {v(RWA)}
        v_add_u32 {v(RRA)}, s19, v5
        v_lshlrev_b32 {v(RRA)}, 4, {v(RRA)}
        v_lshl_add_u32 {v(RRA)}, v2, 9, {v(RRA)}
        s_mov_b32 s23, {fhex(2.0**22/640)}
        v_mov_b32 {v(EPS)}, {fhex(1e-5*2.0**22)}
        v_cmp_eq_u32 vcc, 0, v4
        v_mov_b32 {v(DCM)}, 0xffff
        v_cndmask_b32 {v(DCM)}, -1, {v(DCM)}, vcc
        """)
        matrix("v_mul_f32 {d}, "+fhex(1/32)+", {i}", "v_fma_f32 {d}, {g}, 4.0, 0.5\nv_mul_f32 {d}, {d}, {st}",
               lambda ah, q, rr: (ah == 1, sg(rr) if ah else 1, q == 1), AO4, True)
    def part2():
        k.e(f"""
        s_and_b32 s21, s3, 1
        v_lshl_add_u32 {v(kf)}, v2, 3, s21
        v_cvt_f32_u32 {v(kf)}, {v(kf)}
        """)
        for un in range(2):
            if un: k.e(f"v_add_f32 {v(kf)}, {fhex(32.0)}, {v(kf)}")
            for nt in range(2):
                b = (un*2+nt)*4
                k.e(f"v_add_f32 {v(n2b)}, {fhex(16.0*nt)}, {v(fi)}\nv_mul_f32 {v(n2b)}, {fhex(1/2048)}, {v(n2b)}")
                k.e(f"v_mul_f32 {v(AR)}, {v(kf)}, {v(n2b)}\nv_add_f32 {v(n2b)}, {v(n2b)}, {v(n2b)}")
                for r in range(4):
                    k.e(f"v_cos_f32 {v(C2+b+r)}, {v(AR)}\nv_sin_f32 {v(S2+b+r)}, {v(AR)}")
                    if r < 3: k.e(f"v_add_f32 {v(AR)}, {v(AR)}, {v(n2b)}")
    k.weave(k.cap(part1), loads, WEV)
    k.stamp(3)
    k.e("s_waitcnt vmcnt(20)")
    k.stamp(4)
    for x in range(8): k.e(f"v_cvt_f32_f64 {v(PK+x)}, {v(RS+2*x,2)}")
    for x in range(8): k.e(f"v_fma_f32 {v(PK+x)}, {v(PK+x)}, s23, {v(EPS)}")
    for x in range(8): k.e(f"v_rsq_f32 {v(PK+x)}, {v(PK+x)}")
    for x in range(8): k.e(f"ds_write_b32 {v(RWA)}, {v(PK+x)} offset:{32768+(x>>1)*2048+(x&1)*32}")
    pf = []
    if PF:
        pf = [lambda: k.e(f"v_lshlrev_b32 {v(TM)}, 7, v0\nbuffer_load_dword {v(TM+18)}, {v(TM)}, s[8:11], s6 offen\ns_add_u32 s6, s6, 8192"),
              lambda: k.e(f"s_mov_b32 exec_hi, 0\nbuffer_load_dword {v(TM+19)}, {v(TM)}, s[8:11], s6 offen\ns_mov_b32 exec_hi, -1")]
    k.weave(k.cap(part2), pf, 30)
    k.e("s_waitcnt lgkmcnt(0)\ns_barrier")
    k.stamp(5)
    for x in range(4): k.e(f"ds_read_b128 {v(RS+4*x,4)}, {v(RRA)} offset:{32768+x*2048}")
    k.e(f"s_waitcnt vmcnt({12+NPF})")
    for x in range(8): k.e(f"v_lshlrev_b32 {v(XL+x)}, 16, {v(XH+x)}\nv_and_b32 {v(XH+x)}, 0xffff0000, {v(XH+x)}")
    k.e("s_waitcnt lgkmcnt(0)")
    for x in range(0, 8, 2):
        k.e(f"v_pk_mul_f32 {v(ACC+x,2)}, {v(XL+x,2)}, {v(RS+x,2)}\nv_pk_mul_f32 {v(ACC+8+x,2)}, {v(XH+x,2)}, {v(RS+x,2)}")
    k.e(f"s_waitcnt vmcnt({4+NPF})")
    k.stamp(6)
    for x in range(8, 16): k.e(f"v_lshlrev_b32 {v(XL+x)}, 16, {v(XH+x)}\nv_and_b32 {v(XH+x)}, 0xffff0000, {v(XH+x)}")
    for x in range(0, 8, 2):
        k.e(f"""v_pk_fma_f32 {v(ACC+16+x,2)}, {v(XL+8+x,2)}, {v(RS+8+x,2)}, {v(ACC+x,2)}
        v_pk_fma_f32 {v(ACC+24+x,2)}, {v(XH+8+x,2)}, {v(RS+8+x,2)}, {v(ACC+8+x,2)}
        v_pk_fma_f32 {v(ACC+x,2)}, {v(XL+8+x,2)}, {v(RS+8+x,2)}, {v(ACC+x,2)} neg_lo:[1,0,0] neg_hi:[1,0,0]
        v_pk_fma_f32 {v(ACC+8+x,2)}, {v(XH+8+x,2)}, {v(RS+8+x,2)}, {v(ACC+8+x,2)} neg_lo:[1,0,0] neg_hi:[1,0,0]""")
    for x in range(8): k.e(f"v_cvt_pk_bf16_f32 {v(PK+x)}, {v(ACC+16+x)}, {v(ACC+24+x)}")
    for x in range(8): k.e(f"v_cvt_pk_bf16_f32 {v(PK+8+x)}, {v(ACC+x)}, {v(ACC+8+x)}")
    k.e(f"s_cmp_lg_u32 s4, 0\ns_cbranch_scc1 {P}_nodc1")
    for x in range(16): k.e(f"v_and_b32 {v(PK+x)}, {v(DCM)}, {v(PK+x)}")
    k.e(f"{P}_nodc1:\ns_nop 1")
    def stage(mat, data_is_A):
        for grp in range(2):
            for ah in range(2):
                for q in range(2):
                    for part in range(2):
                        C = v(ACC+((grp*2+ah)*2+part)*4, 4); Dd = v(PK+grp*8+q*4, 4); M = mat(grp, ah, q, part)
                        A_, B_ = (Dd, M) if data_is_A else (M, Dd)
                        k.e(f"v_mfma_f32_16x16x32_bf16 {C}, {A_}, {B_}, {C if q else 0}")
    def cmul(b, C, S, conj_w, swap, after, bc=False):
        re, im = ACC+b*8, ACC+b*8+4
        T0, T1 = RS+(b % 2)*8, RS+(b % 2)*8+4
        ng = " neg_lo:[1,0,0] neg_hi:[1,0,0]"
        for r in (0, 2):
            cc = v(C+b*2, 2) if bc else v(C+b*4+r, 2)
            os_ = (f" op_sel:[0,{r>>1}] op_sel_hi:[1,{r>>1}]") if bc else ""
            k.e(f"v_pk_mul_f32 {v(T0+r,2)}, {v(re+r,2)}, {cc}{os_}\nv_pk_mul_f32 {v(T1+r,2)}, {v(im+r,2)}, {cc}{os_}")
        for r in (0, 2):
            ss_ = v(S+b*2, 2) if bc else v(S+b*4+r, 2)
            os_ = (f" op_sel:[0,{r>>1},0] op_sel_hi:[1,{r>>1},1]") if bc else ""
            k.e(f"v_pk_fma_f32 {v(T0+r,2)}, {v(im+r,2)}, {ss_}, {v(T0+r,2)}{os_}{ng if conj_w else ''}")
            k.e(f"v_pk_fma_f32 {v(T1+r,2)}, {v(re+r,2)}, {ss_}, {v(T1+r,2)}{os_}{'' if conj_w else ng}")
        for r in range(4):
            x, y = (T1+r, T0+r) if swap else (T0+r, T1+r)
            pos = ((r & 1)*2+(r >> 1)) if bc else r
            k.e(f"v_cvt_pk_bf16_f32 {v(PK+b*4+pos)}, {v(x)}, {v(y)}")
        if after: k.e(after)
    mF = lambda grp, ah, q, part: v(MF+mi(ah, q, part), 4)
    k.stamp(7)
    stage(lambda grp, ah, q, part: mF(grp, ah, q, part) if grp == 0 else a(AO1+mi(ah, q, part), 4), True)
    for b in range(4):
        o = (b >> 1)*4096+(b & 1)*2048
        cmul(b, C1, S1, False, False, f"ds_write_b64 {v(W1A)}, {v(PK+4*b,2)} offset:{o}\nds_write_b64 {v(W1A)}, {v(PK+4*b+2,2)} offset:{o+8192}", bc=True)
    k.e(f"s_waitcnt vmcnt({NPF})")
    for x in range(8): k.e(f"v_lshlrev_b32 {v(WL+x)}, 16, {v(WH+x)}\nv_and_b32 {v(WH+x)}, 0xffff0000, {v(WH+x)}")
    k.stamp(8)
    k.e("s_waitcnt lgkmcnt(0)\ns_barrier")
    k.stamp(9)
    for un in range(2):
        k.e(f"ds_read_b128 {v(PK+un*8,4)}, {v(R1A)} offset:{un*2048}\nds_read_b128 {v(PK+un*8+4,4)}, {v(R1B)} offset:{un*2048}")
    for x in range(8, 16): k.e(f"v_lshlrev_b32 {v(WL+x)}, 16, {v(WH+x)}\nv_and_b32 {v(WH+x)}, 0xffff0000, {v(WH+x)}")
    k.e("s_waitcnt lgkmcnt(0)")
    stage(mF, False)
    for b in range(4): cmul(b, WL, WH, True, True, None)
    stage(mF, True)
    for b in range(4):
        cmul(b, C2, S2, False, False, f"ds_write_b128 {v(W2A if (b>>1)==0 else W2B)}, {v(PK+4*b,4)} offset:{(b&1)*4096}")
    k.stamp(10)
    k.e("s_waitcnt lgkmcnt(0)\ns_barrier")
    k.stamp(11)
    for par in range(2):
        k.e(f"ds_read_b128 {v(PK+par*8,4)}, {v(R2A)} offset:{par*8192}\nds_read_b128 {v(PK+par*8+4,4)}, {v(R2B)} offset:{par*8192}")
    k.e("s_waitcnt lgkmcnt(0)")
    stage(lambda grp, ah, q, part: mF(grp, ah, q, part) if grp == 0 else a(AO4+mi(ah, q, part), 4), False)
    k.e(f"s_cmp_lg_u32 s4, 0\ns_cbranch_scc1 {P}_nodc2\nv_ashrrev_i32 {v(DCM)}, 31, {v(DCM)}")
    for b in range(4):
        for r in range(4): k.e(f"v_and_b32 {v(ACC+b*8+r)}, {v(DCM)}, {v(ACC+b*8+r)}")
    k.e(f"{P}_nodc2:\ns_nop 7")
    k.stamp(12)
    ng = " neg_lo:[0,1] neg_hi:[0,1]"
    for mt in range(2):
        E, O = ACC+mt*8, ACC+16+mt*8
        for r in (0, 2):
            for (X, off) in ((XL, 4), (XH, 0)):
                k.e(f"v_pk_add_f32 {v(X+mt*4+r,2)}, {v(X+mt*4+r,2)}, {v(E+off+r,2)}\nv_pk_add_f32 {v(X+8+mt*4+r,2)}, {v(X+8+mt*4+r,2)}, {v(E+off+r,2)}")
        for r in (0, 2):
            for (X, off) in ((XL, 4), (XH, 0)):
                k.e(f"v_pk_add_f32 {v(X+mt*4+r,2)}, {v(X+mt*4+r,2)}, {v(O+off+r,2)}\nv_pk_add_f32 {v(X+8+mt*4+r,2)}, {v(X+8+mt*4+r,2)}, {v(O+off+r,2)}{ng}")
        for o in range(2):
            for r in range(4):
                x = o*8+mt*4+r
                k.e(f"v_cvt_pk_bf16_f32 {v(PK+x)}, {v(XL+x)}, {v(XH+x)}")
                k.e(f"buffer_store_dword {v(PK+x)}, v6, s[8:11], s{28+o*2+mt} offen offset:{256*r} {SC}")
    k.stamp(13)
    k.end()

def head(k, P, XIN, XOUT, SS):
    k.zero_stamps(); k.stamp(0)
    k.e(f"""
    s_cmp_ge_u32 s2, 256
    s_cbranch_scc1 {P}_end
    s_load_dwordx2 s[8:9], s[0:1], 80
    s_load_dwordx4 s[24:27], s[0:1], 48
    s_mov_b32 s48, {XIN}
    s_mov_b32 s49, {XOUT}
    s_mov_b32 s50, {SS}
    v_lshrrev_b32 v1, 6, v0
    v_and_b32 v0, 63, v0
    v_readfirstlane_b32 s3, v1
    v_and_b32 v1, 15, v0
    v_lshrrev_b32 v2, 4, v0
    v_lshlrev_b32 v3, 4, v0
    """)
    srd(k, 8, WSBYTES)
    if P == "K2": k.e(f"s_cmp_ge_u32 s2, 160\ns_cbranch_scc1 {P}_side\nCOL_body:")
    else: k.e(f"s_cmp_lt_u32 s2, 160\ns_cbranch_scc1 COL_body")

PFW = os.environ.get("PFW", "1") == "1"

def build_k2():
    k = Kern("k2_kernel", 256, 256, 122880, 256, 64, sid=1)
    head(k, "K2", XH0, XH1, SS0)
    column(k, "COL", PFW)
    FR, ACC, RING, NR = 16, 176, 224, 8
    k.e(f"""
    K2_side:
    s_sub_u32 s4, s2, 160
    s_and_b32 s5, s4, 7
    s_lshr_b32 s4, s4, 3
    s_mul_i32 s5, s5, 12
    s_add_u32 s4, s4, s5
    s_cmp_ge_u32 s4, 85
    s_cbranch_scc1 K2_end
    s_mul_i32 s7, s4, 13108
    s_lshr_b32 s7, s7, 16
    s_mul_i32 s6, s7, 5
    s_sub_u32 s6, s4, s6
    s_lshl_b32 s45, s6, 7
    s_lshl_b32 s44, s3, 5
    s_add_u32 s44, s44, s45
    v_lshrrev_b32 v8, 3, v0
    v_and_b32 v9, 7, v0
    v_xor_b32 v9, v9, v8
    v_lshlrev_b32 v9, 4, v9
    v_mul_u32_u24 v8, 1280, v8
    v_add_u32 v8, v8, v9
    s_and_b32 s13, s7, 15
    s_mul_i32 s13, s13, {96*1280}
    s_and_b32 s14, s3, 1
    s_mul_i32 s15, s14, {8*1280}
    s_add_u32 s13, s13, s15
    s_lshr_b32 s15, s3, 1
    s_lshl_b32 s41, s15, 7
    s_add_u32 s13, s13, s41
    s_lshl_b32 s14, s14, 10
    s_lshl_b32 s15, s15, 11
    s_add_u32 s14, s14, s15
    s_mov_b32 s15, s6
    """)
    rows_addr(k, 4, 1, 2)
    vm = VM(k)
    todo = [(ch, u) for ch in range(5) for u in range(6)]
    st = {"n": 0}
    def one():
        ch, u = todo.pop(0)
        if u == 0: k.e("s_lshl_b32 s41, s15, 8\ns_add_u32 s41, s41, s13\ns_add_u32 s15, s15, 1\ns_cmp_eq_u32 s15, 5\ns_cselect_b32 s15, 0, s15")
        k.e(f"s_add_u32 m0, s14, {u*20480+ch*4096}")
        vm.op("buffer_load_dwordx4 v8, s[16:19], s41 offen lds", ch)
        if u < 5: k.e(f"s_add_u32 s41, s41, {16*1280}")
    def hook():
        n = st["n"]; st["n"] += 1
        if n == 6:
            k.stamp(8)
            k.e(f"""s_waitcnt lgkmcnt(0)
            s_cmp_eq_u32 s7, 16
            s_cselect_b32 s16, s26, s24
            s_cselect_b32 s17, s27, s25
            s_mov_b32 s18, {1536*1280}
            s_cselect_b32 s18, 1280, s18
            s_mov_b32 s19, 0x00020000""")
            k.stamp(9)
        if n >= 6:
            for _ in range(2 if n % 3 == 0 else 1):
                if todo: one()
    fgen(k, 44, 45, 0, 1, 2, RING, FR, hook)
    fgen(k, 44, 45, 1, 1, 2, RING, FR, hook)
    while todo: one()
    k.stamp(1)
    def sync(ch):
        vm.wait(ch); k.e("s_barrier")
        if ch in (0, 1, 4): k.stamp(2+ch)
    rowdft_loop(k, 6, FR, ACC, RING, NR, rows_rd(k, 4), 1, True, sync)
    k.stamp(7)
    k.e(f"""
    s_cmp_eq_u32 s7, 16
    s_cbranch_scc1 K2_b2
    s_lshr_b32 s46, s44, 4
    s_mul_i32 s47, s7, {3*5120}
    s_add_u32 s47, s47, {W2P}
    """)
    for th in range(2):
        k.e(f"""
        s_mul_i32 s48, s46, 13108
        s_lshr_b32 s48, s48, 16
        s_mul_i32 s49, s48, {48*5120-5*1024}
        s_lshl_b32 s48, s46, 10
        s_add_u32 s48, s48, s49
        s_add_u32 s48, s48, s47
        s_add_u32 s46, s46, 1
        """)
        for x in range(3):
            Pk = RING+(th*3+x)*4
            for hf in range(2):
                A = ACC+((2*x+hf)*2+th)*4
                k.e(f"v_cvt_pk_bf16_f32 {v(Pk+2*hf)}, {v(A)}, {v(A+1)}\nv_cvt_pk_bf16_f32 {v(Pk+2*hf+1)}, {v(A+2)}, {v(A+3)}")
            k.e(f"buffer_store_dwordx4 {v(Pk,4)}, v3, s[8:11], s48 offen {SC}\ns_add_u32 s48, s48, 5120")
    k.end()
    k.e(f"""
    K2_b2:
    s_lshl_b32 s46, s44, 2
    s_add_u32 s46, s46, {B2P}
    v_lshlrev_b32 v8, 2, v1
    s_mov_b64 exec, 0xffff
    s_nop 7
    buffer_store_dword {v(ACC)}, v8, s[8:11], s46 offen
    buffer_store_dword {v(ACC+4)}, v8, s[8:11], s46 offen offset:64
    """)
    k.end()
    k.e("K2_end:\ns_endpgm")
    return k

def build_k5():
    k = Kern("k4_kernel", 256, 256, 102400, 256, 64, sid=3)
    head(k, "K5", XH2, XH3, SS2)
    WL, WO = 8, 40
    k.e(f"""
    K5_side:
    s_sub_u32 s4, s2, 160
    s_lshl_b32 s4, s4, 2
    s_add_u32 s4, s4, s3
    s_mul_i32 s5, s4, 13108
    s_lshr_b32 s5, s5, 16
    s_mul_i32 s6, s5, 5
    s_sub_u32 s6, s4, s6
    v_mul_u32_u24 v4, {4*1280}, v2
    v_lshl_add_u32 v4, v1, 4, v4
    s_mul_i32 s12, s5, {32*1280}
    s_lshl_b32 s13, s6, 8
    s_add_u32 s12, s12, s13
    s_add_u32 s13, s12, {16*1280}
    s_waitcnt lgkmcnt(0)
    s_mov_b32 s26, {1536*1280}
    s_mov_b32 s27, 0x00020000
    """)
    for e in range(8):
        k.e(f"buffer_load_dwordx4 {v(WL+4*e,4)}, v4, s[24:27], s{12+(e>>2)} offen offset:{1280*(e&3)}")
    k.e(f"""
    s_mov_b32 s14, s4
    s_mov_b32 s20, {fhex(1/640)}
    s_mov_b32 s21, {fhex(-640.0)}
    s_mov_b32 s22, {fhex(math.sqrt(2/640))}
    s_mov_b32 s23, {fhex(7.0)}
    K5_floop:
    s_mul_i32 s15, s14, 5243
    s_lshr_b32 s15, s15, 19
    s_mul_i32 s16, s15, 100
    s_sub_u32 s16, s14, s16
    s_mul_i32 s17, s16, 13108
    s_lshr_b32 s17, s17, 16
    s_mul_i32 s18, s17, 5
    s_sub_u32 s18, s16, s18
    s_lshl_b32 s40, s18, 4
    s_mul_i32 s41, s15, 80
    s_add_u32 s40, s40, s41
    v_add_u32 v80, s40, v1
    s_lshl_b32 s41, s17, 4
    v_lshl_add_u32 v81, v2, 1, s41
    v_cmp_eq_u32 vcc, 0, v81
    v_mul_u32_u24 v82, v80, v81
    v_cvt_f32_u32 v82, v82
    v_cvt_f32_u32 v83, v80
    """)
    for m in range(4):
        k.e(f"""
        v_mul_f32 v84, s20, v82
        v_floor_f32 v84, v84
        v_fma_f32 v84, v84, s21, v82
        v_mul_f32 v84, s20, v84
        v_cos_f32 v85, v84
        v_sin_f32 v86, v84
        {'v_fma_f32 v82, v83, s23, v82' if m == 1 else 'v_add_f32 v82, v82, v83'}
        v_mul_f32 v85, s22, v85
        v_mul_f32 v86, s22, v86
        v_cvt_pk_bf16_f32 {v(88+m)}, v85, -v86
        """)
    k.e(f"""
    v_mov_b32 v85, {fhex(math.sqrt(1/640))}
    v_cvt_pk_bf16_f32 v85, v85, v85
    v_and_b32 v86, 1, v80
    v_lshlrev_b32 v86, 15, v86
    v_xor_b32 v85, v85, v86
    v_cndmask_b32 v88, v88, v85, vcc
    s_mul_i32 s15, s15, {68*5120}
    s_lshl_b32 s16, s16, 10
    s_add_u32 s15, s15, s16
    s_add_u32 s15, s15, {W2F+48*5120}
    buffer_store_dwordx4 v[88:91], v3, s[8:11], s15 offen {SC}
    s_add_u32 s14, s14, 384
    s_cmp_lt_u32 s14, 800
    s_cbranch_scc1 K5_floop
    s_cmp_ge_u32 s4, 240
    s_cbranch_scc1 K5_fin
    s_lshl_b32 s13, s6, 3
    v_lshrrev_b32 v80, 1, v1
    v_add_u32 v80, s13, v80
    v_mul_u32_u24 v81, 205, v80
    v_lshrrev_b32 v81, 10, v81
    v_mul_u32_u24 v81, {68*5120-5*1024}, v81
    v_lshl_add_u32 v81, v80, 10, v81
    v_lshl_add_u32 v81, v2, 8, v81
    v_and_b32 v82, 1, v1
    v_lshl_add_u32 v81, v82, 7, v81
    s_mul_i32 s12, s5, 5120
    s_add_u32 s12, s12, {W2F}
    s_mov_b32 s50, 0x05040100
    s_mov_b32 s51, 0x07060302
    s_waitcnt vmcnt(0)
    """)
    for t8 in range(8):
        m, hl = t8 >> 1, t8 & 1
        for pp in range(4):
            k.e(f"v_perm_b32 {v(WO+4*t8+pp)}, {v(WL+4*(2*pp+1)+m)}, {v(WL+4*(2*pp)+m)}, s{50+hl}")
        k.e(f"buffer_store_dwordx4 {v(WO+4*t8,4)}, v81, s[8:11], s12 offen offset:{16*t8}")
    k.e("K5_fin:")
    k.end()
    k.e("K5_end:\ns_endpgm")
    return k
```

```python
from asmlib import *
from layout import *
from k1 import srd, VM, SC, code_prefetch
import math
PRE1 = 3
SPIN = 200000

def stub(name, P, sid, XIN, H, WT, KS, flg, final):
    k = Kern(name, 256, 256, 122880, 256, 248, sid=sid)
    k.zero_stamps(); k.stamp(0)
    k.e(f"""
    s_cmp_ge_u32 s2, 256
    s_cbranch_scc1 {P}_end
    s_load_dwordx2 s[8:9], s[0:1], 80
    s_load_dwordx2 s[12:13], s[0:1], 40
    s_load_dwordx2 s[28:29], s[0:1], 56
    s_load_dwordx2 s[32:33], s[0:1], 64
    s_mov_b32 s48, {XIN}
    s_mov_b32 s49, {H}
    s_mov_b32 s50, {WT}
    s_mov_b32 s51, {KS*5120}
    s_mov_b32 s52, {flg}
    s_mov_b32 s53, {final}
    """)
    return k

def build_k5():
    k = stub("k5_kernel", "K5m", 4, XH3, H2, W2F, 68, FLG+4096, 1)
    k.e("s_branch MLP_body\nK5m_end:\ns_endpgm")
    return k

def build_k3():
    k = stub("k3_kernel", "K3", 2, XH1, H1, W2P, 48, FLG, 0)
    X, ACC, RING, NR = 16, 176, 224, 8
    GA = 240
    k.e(f"""
    MLP_body:
    v_lshrrev_b32 v1, 6, v0
    v_and_b32 v0, 63, v0
    v_readfirstlane_b32 s3, v1
    v_and_b32 v1, 15, v0
    v_lshrrev_b32 v2, 4, v0
    v_lshlrev_b32 v3, 4, v0
    v_add_u32 v4, 61440, v3
    v_lshlrev_b32 v5, 14, v2
    v_lshl_add_u32 v5, v1, 4, v5
    v_add_u32 v6, 65536, v5
    v_lshlrev_b32 v7, 3, v2
    v_cmp_eq_u32 vcc, 0, v2
    v_mov_b32 v8, 0xffff
    v_cndmask_b32 v8, -1, v8, vcc
    v_add_u32 v9, 4096, v3
    s_and_b32 s4, s2, 7
    s_lshr_b32 s5, s2, 3
    s_lshr_b32 s6, s4, 1
    s_lshl_b32 s6, s6, 2
    s_lshr_b32 s7, s5, 3
    s_add_u32 s6, s6, s7
    s_and_b32 s4, s4, 1
    s_lshl_b32 s7, s4, 3
    s_and_b32 s16, s5, 7
    s_add_u32 s7, s7, s16
    s_lshl_b32 s16, s6, 2
    s_add_u32 s16, s16, s3
    s_mul_i32 s20, s16, {2*49152}
    s_lshl_b32 s16, s16, 8
    s_add_u32 s16, s16, s48
    s_mul_i32 s17, s3, 3072
    s_mov_b32 m0, s17
    s_mul_i32 s18, s7, 122880
    s_add_u32 s18, s18, s17
    s_add_u32 s18, s18, {W1P}
    s_mul_i32 s19, s7, 192
    s_mul_i32 s21, s7, 3072
    s_add_u32 s20, s20, s21
    s_add_u32 s20, s20, s49
    s_add_u32 s21, s20, 49152
    s_lshl_b32 s17, s6, 8
    s_add_u32 s52, s52, s17
    s_lshl_b32 s4, s4, 2
    s_and_b32 s17, s5, 3
    s_add_u32 s4, s4, s17
    s_lshl_b32 s6, s6, 1
    s_bfe_u32 s17, s5, 0x10002
    s_add_u32 s6, s6, s17
    s_mul_i32 s54, s4, s51
    s_add_u32 s54, s54, s50
    s_mul_i32 s55, s3, {5*5120}
    s_add_u32 s55, s55, s54
    s_add_u32 s55, s55, {48*5120}
    s_mul_i32 s17, s3, {12*5120}
    s_add_u32 s54, s54, s17
    """)
    srd(k, 8, WSBYTES); srd(k, 12, 3072); srd(k, 28, 1280); srd(k, 32, XSZ)
    vm = VM(k)
    def group_loads(g):
        def dma(x): return (lambda: vm.op(f"buffer_load_dwordx4 v3, s[8:11], s18 offen offset:{1024*x} lds"),
                            ["s_add_u32 m0, m0, 12288", "s_add_u32 s18, s18, 12288"] if x == 2 else [])
        def xl(q, h): return (lambda: vm.op(f"buffer_load_dwordx4 {v(X+8*q+4*h,4)}, v{5+h}, s[8:11], s16 offen", ("g", g)),
                              ["s_add_u32 s16, s16, 131072"] if h else [])
        return [dma(0), xl(2*g, 0), xl(2*g, 1), dma(1), dma(2), xl(2*g+1, 0), xl(2*g+1, 1)]
    def b1l(i): return (lambda: vm.op(f"buffer_load_dwordx2 {v(X+2*i,2)}, v7, s[12:15], s19 offen offset:{32*i}", "b1"), [])
    def w2l(j):
        i, t = divmod(j, 5)
        if t < 4: return (lambda: vm.op(f"buffer_load_dwordx4 {a(i*20+4*t,4)}, v3, s[8:11], s54 offen offset:{1024*t}"), [])
        return (lambda: vm.op(f"buffer_load_dwordx4 {a(i*20+4*t,4)}, v9, s[8:11], s54 offen"), ["s_add_u32 s54, s54, 5120"])
    def run(ld):
        ld[0]()
        for x in ld[1]: k.e(x)
    k.e("s_waitcnt lgkmcnt(0)")
    k.stamp(1)
    for g in range(PRE1):
        for ld in group_loads(g): run(ld)
    k.stamp(2)
    def rd(i):
        off = i*1024
        base, off = (3, off) if off < 61440 else (4, off-61440)
        k.e(f"ds_read_b128 {v(RING+(i%NR)*4,4)}, {v(base)} offset:{off}")
    def swap(q, x): k.e(f"v_swap_b32 {v(X+8*q+2+x)}, {v(X+8*q+4+x)}")
    vm.wait(("g", 0)); k.e("s_barrier")
    k.stamp(3)
    for i in range(6): rd(i)
    swap(0, 0); swap(0, 1)
    k.e(f"v_and_b32 {v(X)}, v8, {v(X)}\nv_and_b32 {v(X+4)}, v8, {v(X+4)}\ns_waitcnt lgkmcnt(4)")
    w2q = [w2l(j) for j in range(60)]
    pend = []; salu = []
    seq = [(0,0),(0,1),(1,0),(1,1),('G',0),(2,0),(2,1),(3,0),(3,1),(4,0),(4,1),('G',1),(5,0),(5,1)]
    for q in range(20):
        if q % 2 == 0:
            g = q//2 + PRE1
            assert not pend
            if g < 10: pend = group_loads(g)
            elif g == 10: pend = [b1l(x) for x in range(6)] + [w2q.pop(0), w2q.pop(0)]
            else: pend = [w2q.pop(0) for _ in range(8)]
        last = q == 19
        for idx, (t, par) in enumerate(seq):
            if t == 'G':
                C = a(GA+4*par, 4); Xo = v(X+8*q+4*par, 4)
                k.e(f"v_mfma_f32_16x16x32_bf16 {C}, {Xo}, {Xo}, {C if q else 0}")
            else:
                i = q*6+t
                C = v(ACC+(par*6+t)*4, 4)
                k.e(f"v_mfma_f32_16x16x32_bf16 {C}, {v(RING+(i%NR)*4,4)}, {v(X+8*q+4*par,4)}, {C if q else 0}")
            n = 0
            if t != 'G' and par == 0 and not last: rd(i+6); n += 1
            if idx in (1, 3, 6, 10) and pend:
                assert not salu
                ld = pend.pop(0); ld[0](); salu += ld[1]; n += 1
            if idx in (5, 9) and not last: swap(q+1, idx//9); n += 1
            if idx == 11 and q % 2 == 0 and q < 18:
                vm.wait(("g", q//2+1)); k.e("s_barrier"); n += 2
                if q//2+1 in (1, 5, 9): k.stamp(4+(q//2+1)//4)
            if idx in (4, 8, 13):
                if salu: k.e(salu.pop(0))
                if not (last and idx == 13):
                    k.e(f"s_waitcnt lgkmcnt({4 if not last else {4: 2, 8: 0}[idx]})")
                n = 2
            while n < 2 and salu: k.e(salu.pop(0)); n += 1
    assert not pend and not salu
    k.stamp(7)
    K1c = -2*math.sqrt(2/math.pi)*math.log2(math.e); K3c = K1c*0.044715
    BU, G, T1, PK = X+16, X+40, X+48, X+64
    def stats():
        for x in range(8): k.e(f"v_accvgpr_read_b32 {v(G+x)}, {a(GA+x)}")
        k.e(f"""
        v_and_b32 v12, 2, v0
        v_cmp_ne_u32 vcc, 0, v12
        v_and_b32 v12, 1, v0
        v_lshrrev_b32 v13, 2, v1
        v_cndmask_b32 {v(G)}, {v(G)}, {v(G+2)}, vcc
        v_cndmask_b32 {v(G+1)}, {v(G+1)}, {v(G+3)}, vcc
        v_cndmask_b32 {v(G+4)}, {v(G+4)}, {v(G+6)}, vcc
        v_cndmask_b32 {v(G+5)}, {v(G+5)}, {v(G+7)}, vcc
        v_cmp_ne_u32 vcc, 0, v12
        v_lshl_add_u32 v13, v13, 4, v1
        v_lshlrev_b32 v13, 2, v13
        v_cndmask_b32 {v(G)}, {v(G)}, {v(G+1)}, vcc
        v_cndmask_b32 {v(G+4)}, {v(G+4)}, {v(G+5)}, vcc
        ds_bpermute_b32 v14, v13, {v(G)}
        ds_bpermute_b32 v15, v13, {v(G+4)}
        """)
        for i in range(12):
            k.e(f"v_lshlrev_b32 {v(BU+2*i)}, 16, {v(X+i)}\nv_and_b32 {v(BU+2*i+1)}, 0xffff0000, {v(X+i)}")
        k.e(f"""
        s_mov_b32 s22, {fhex(1/640)}
        v_mov_b32 v12, {fhex(1e-5)}
        s_waitcnt lgkmcnt(0)
        v_fma_f32 v14, v14, s22, v12
        v_fma_f32 v15, v15, s22, v12
        v_rsq_f32 v14, v14
        v_rsq_f32 v15, v15
        s_mov_b32 s22, {fhex(K3c)}
        v_mov_b32 v12, {fhex(K1c)}
        """)
    vm.wait("b1")
    k.weave(k.cap(stats), [(lambda ld=w2q.pop(0): run(ld)) for _ in range(4)], 14, 4)
    k.stamp(8)
    for par in range(2):
        for p in range(3):
            A = ACC+(par*6+2*p)*4
            Tt = T1+((par*3+p) % 2)*8
            Pk = PK+(par*3+p)*4
            for e in range(0, 8, 2): k.e(f"v_pk_fma_f32 {v(A+e,2)}, {v(A+e,2)}, v[14:15], {v(BU+8*p+e,2)} op_sel:[0,{par},0] op_sel_hi:[1,{par},1]")
            for e in range(0, 8, 2): k.e(f"v_pk_mul_f32 {v(Tt+e,2)}, {v(A+e,2)}, {v(A+e,2)}")
            for e in range(0, 8, 2): k.e(f"v_pk_fma_f32 {v(Tt+e,2)}, {v(Tt+e,2)}, s[22:23], v[12:13] op_sel_hi:[1,0,0]")
            for e in range(0, 8, 2): k.e(f"v_pk_mul_f32 {v(Tt+e,2)}, {v(Tt+e,2)}, {v(A+e,2)}")
            for e in range(8): k.e(f"v_exp_f32 {v(Tt+e)}, {v(Tt+e)}")
            run(w2q.pop(0))
            for e in range(0, 8, 2): k.e(f"v_pk_add_f32 {v(Tt+e,2)}, {v(Tt+e,2)}, 1.0 op_sel_hi:[1,0]")
            for e in range(8): k.e(f"v_rcp_f32 {v(Tt+e)}, {v(Tt+e)}")
            run(w2q.pop(0))
            for e in range(0, 8, 2): k.e(f"v_pk_mul_f32 {v(Tt+e,2)}, {v(Tt+e,2)}, {v(A+e,2)}")
            for e in range(4): k.e(f"v_cvt_pk_bf16_f32 {v(Pk+e)}, {v(Tt+2*e)}, {v(Tt+2*e+1)}")
            vm.op(f"buffer_store_dwordx4 {v(Pk,4)}, v3, s[8:11], s{20+par} offen offset:{1024*p} sc1", "hst")
    k.stamp(9)
    AC2 = 176
    def setup2():
        k.e(f"""
        s_mul_i32 s22, s3, 12288
        s_lshl_b32 s23, s6, 2
        s_and_b32 s47, s3, 1
        """)
        for u in range(4):
            k.e(f"""
            s_xor_b32 s16, s3, {u}
            s_mul_i32 s17, s16, 15360
            v_add_u32 {v(10+u)}, s17, v3
            s_add_u32 s16, s16, s23
            s_mul_i32 s{24+u}, s16, 49152
            s_add_u32 s{24+u}, s{24+u}, s22
            s_add_u32 s{24+u}, s{24+u}, s49
            s_lshr_b32 s{36+u}, s16, 1
            s_lshl_b32 s{36+u}, s{36+u}, 8
            """)
            if u == 0: k.e("s_lshr_b32 s46, s16, 1")
        k.e("v_mov_b32 v14, 1\nv_mov_b32 v15, 0")
    k.weave(k.cap(setup2), [(lambda ld=w2q.pop(0): run(ld)) for _ in range(8)], 5, 0)
    vm.wait("hst")
    k.e(f"""
    s_barrier
    s_cmp_lg_u32 s3, 0
    s_cbranch_scc1 MLP_nosig
    s_mov_b64 exec, 1
    buffer_atomic_add v14, v15, s[8:11], s52 offen sc1
    s_mov_b64 exec, -1
    MLP_nosig:
    """)
    k.stamp(10)
    while w2q: run(w2q.pop(0))
    EX = 144
    k.e(f"""
    s_cmp_eq_u32 s53, 1
    s_cbranch_scc1 MLP_xpart
    v_lshlrev_b32 v6, 4, v2
    s_mul_i32 s40, s4, 320
    s_add_u32 s40, s40, {B2P}
    s_mul_i32 s41, s4, {20*16384}
    s_add_u32 s41, s41, s36
    s_lshl_b32 s43, s47, 3
    s_add_u32 s41, s41, s43
    s_add_u32 s44, s41, {XH2}
    s_add_u32 s41, s41, s48
    """)
    for t in range(5):
        k.e(f"buffer_load_dwordx4 {v(AC2+4*t,4)}, v6, s[8:11], s40 offen offset:{64*t}")
        k.e(f"buffer_load_dwordx2 {v(EX+2*t,2)}, v5, s[8:11], s41 offen\ns_add_u32 s41, s41, 65536")
    for r in range(20, 80): k.e(f"v_mov_b32 {v(AC2+r)}, 0")
    k.e(f"""
    s_lshl_b32 s45, s47, 7
    s_add_u32 s45, s45, s36
    s_add_u32 s45, s45, {SS2}
    v_lshlrev_b32 v9, 3, v1
    v_or_b32 v8, s4, v2
    v_cmp_eq_u32 vcc, 0, v8
    v_cndmask_b32 v8, -1, 0, vcc
    s_waitcnt vmcnt(0)
    """)
    for i in range(10):
        k.e(f"v_lshlrev_b32 {v(EX+10+2*i)}, 16, {v(EX+i)}\nv_and_b32 {v(EX+10+2*i+1)}, 0xffff0000, {v(EX+i)}")
    for e in range(0, 20, 2): k.e(f"v_pk_add_f32 {v(AC2+e,2)}, {v(AC2+e,2)}, {v(EX+10+e,2)}")
    k.e(f"""
    MLP_poll0:
    s_cmp_lg_u32 s3, 0
    s_cbranch_scc1 MLP_go
    s_mov_b64 exec, 1
    s_mov_b32 s16, 0
    MLP_poll:
    buffer_load_dword v14, v15, s[8:11], s52 offen sc1
    s_add_u32 s16, s16, 1
    s_waitcnt vmcnt(0)
    v_cmp_le_u32 vcc, 16, v14
    s_cmp_gt_u32 s16, {SPIN}
    s_cbranch_scc1 MLP_brk
    s_cbranch_vccz MLP_poll
    MLP_brk:
    s_mov_b64 exec, -1
    MLP_go:
    """)
    k.stamp(11)
    k.e("s_barrier")
    k.stamp(12)
    vm = VM(k)
    us = (1, 2, 3, 0)
    NB = 32
    def bl(j):
        u, i = us[j//12], j % 12
        vm.op(f"buffer_load_dwordx4 {v(16+(j%NB)*4,4)}, v3, s[8:11], s{24+u} offen offset:{1024*(i%4)} sc1", j)
        if i % 4 == 3: k.e(f"s_add_u32 s{24+u}, s{24+u}, 4096")
    LA = 14
    for j in range(LA): bl(j)
    RB = AC2+20
    wr = []; adds = []
    for j in range(48):
        u, i = us[j//12], j % 12
        if i == 1 and j > 12: wr += [(us[j//12-1], t) for t in range(5)]
        vm.wait(j)
        if j == 0: k.stamp(13)
        for t in range(5):
            C = v(AC2+(u*5+t)*4, 4)
            k.e(f"v_mfma_f32_16x16x32_bf16 {C}, {a(i*20+4*t,4)}, {v(16+(j%NB)*4,4)}, {C}")
            if t == 0 and j+LA < 48: bl(j+LA)
            if t in (1, 3) and wr:
                uu, tt = wr.pop(0)
                k.e(f"ds_write_b128 {v(10+uu)}, {v(AC2+(uu*5+tt)*4,4)} offset:{((uu-1)*5+tt)*1024}")
            if j == 41 and t == 0: k.e("s_waitcnt lgkmcnt(0)\ns_barrier")
            if j in (41, 42) and (j, t) != (41, 0):
                x0 = ((j-41)*5+t-1)*2
                for x in (x0, x0+1):
                    if x < 15: k.e(f"ds_read_b128 {v(RB+4*x,4)}, v10 offset:{x*1024}")
            if j == 44 and t == 0:
                k.e("s_waitcnt lgkmcnt(0)")
                adds = [f"v_add_f32 {v(RB+e)}, {v(RB+e)}, {v(RB+20+e)}" for e in range(20)] + [f"v_add_f32 {v(RB+e)}, {v(RB+e)}, {v(RB+40+e)}" for e in range(20)]
            elif adds:
                k.e(adds.pop(0)); k.e(adds.pop(0))
    while adds: k.e(adds.pop(0))
    k.stamp(14)
    PK2 = 16
    k.e("s_cmp_eq_u32 s53, 1\ns_cbranch_scc1 MLP_fin")
    def fin(store):
        for t in range(5):
            for e in (0, 2): k.e(f"v_pk_add_f32 {v(AC2+4*t+e,2)}, {v(AC2+4*t+e,2)}, {v(RB+4*t+e,2)}")
            for e in (0, 1): k.e(f"v_cvt_pk_bf16_f32 {v(PK2+2*t+e)}, {v(AC2+4*t+2*e)}, {v(AC2+4*t+2*e+1)}")
            store(t)
    fin(lambda t: k.e(f"buffer_store_dwordx2 {v(PK2+2*t,2)}, v5, s[8:11], s44 offen\ns_add_u32 s44, s44, 65536"))
    k.e(f"v_and_b32 {v(AC2+1)}, v8, {v(AC2+1)}\nv_pk_mul_f32 v[14:15], {v(AC2,2)}, {v(AC2,2)}")
    for e in range(2, 20, 2): k.e(f"v_pk_fma_f32 v[14:15], {v(AC2+e,2)}, {v(AC2+e,2)}, v[14:15]")
    k.e(f"""
    v_add_f32 v14, v14, v15
    v_mov_b32 v15, v14
    v_permlane32_swap_b32 v14, v15
    v_add_f32 v14, v14, v15
    v_mov_b32 v15, v14
    v_permlane16_swap_b32 v14, v15
    v_add_f32 v14, v14, v15
    v_cvt_f64_f32 v[14:15], v14
    s_mov_b64 exec, 0xffff
    buffer_atomic_add_f64 v[14:15], v9, s[8:11], s45 offen
    """)
    k.end()
    k.e("MLP_fin:\ns_nop 7")
    fin(lambda t: k.e(f"buffer_store_dwordx2 {v(PK2+2*t,2)}, v8, s[32:35], s44 offen offset:{32*t}"))
    k.end()
    k.e(f"""
    MLP_xpart:
    s_mul_i32 s40, s4, 160
    v_mul_u32_u24 v8, 2560, v1
    v_add_u32 v8, v8, v7
    s_lshl_b32 s44, s46, 5
    s_add_u32 s44, s44, s47
    s_mul_i32 s44, s44, 1280
    s_add_u32 s44, s44, s40
    s_mul_i32 s16, s3, {5*131072}
    s_add_u32 s16, s16, s48
    """)
    for u in range(4):
        k.e(f"s_xor_b32 s17, s47, {u&1}\ns_lshl_b32 s17, s17, 16\ns_add_u32 s{36+u}, s{36+u}, s17\ns_add_u32 s{36+u}, s{36+u}, s16")
    vm = VM(k)
    BX = 160
    for t in range(5): vm.op(f"buffer_load_dwordx2 {v(BX+2*t,2)}, v7, s[28:31], s40 offen offset:{32*t}", "b2")
    def xs(i):
        R = 16+(i % 4)*36
        L = []
        for u in range(4):
            L.append(lambda u=u: (vm.op(f"buffer_load_dwordx4 {v(R+4*u,4)}, v5, s[8:11], s{36+u} offen"), k.e(f"s_add_u32 s{36+u}, s{36+u}, 131072")))
        for t in range(4):
            L.append(lambda t=t: vm.op(f"buffer_load_dwordx4 {v(R+16+4*t,4)}, v3, s[8:11], s55 offen offset:{1024*t}"))
        L.append(lambda: (vm.op(f"buffer_load_dwordx4 {v(R+32,4)}, v9, s[8:11], s55 offen", i), k.e("s_add_u32 s55, s55, 5120")))
        return L
    for i in range(2):
        for f in xs(i): f()
    vm.wait("b2")
    for i in range(10):
        k.e(f"v_lshlrev_b32 {v(AC2+2*i)}, 16, {v(BX+i)}\nv_and_b32 {v(AC2+2*i+1)}, 0xffff0000, {v(BX+i)}")
    for i in range(5):
        R = 16+(i % 4)*36
        pend = xs(i+2) if i+2 < 5 else []
        vm.wait(i)
        k.e(f"s_cmp_eq_u32 s47, 0\ns_cbranch_scc1 MLP_sw{i}")
        for b in (0, 8): k.e(f"v_swap_b32 {v(R+b)}, {v(R+b+6)}\nv_swap_b32 {v(R+b+1)}, {v(R+b+7)}")
        k.e(f"s_branch MLP_sx{i}\nMLP_sw{i}:")
        for b in (0, 8): k.e(f"v_swap_b32 {v(R+b+2)}, {v(R+b+4)}\nv_swap_b32 {v(R+b+3)}, {v(R+b+5)}")
        k.e(f"MLP_sx{i}:\ns_nop 1")
        m = 0
        for u in range(4):
            for t in range(5):
                C = v(AC2+(u*5+t)*4, 4)
                k.e(f"v_mfma_f32_16x16x32_bf16 {C}, {v(R+16+4*t,4)}, {v(R+4*u,4)}, {C if (i or u == 0) else 0}")
                m += 1
                if m % 2 == 0 and pend: pend.pop(0)()
    k.e("s_branch MLP_poll0\nK3_end:\ns_endpgm")
    return k
```

```python
XSZ = 2048*640*2
HSZ = 2048*1536*2
def al(x): return (x + 0xFFFF) & ~0xFFFF
_o = 0
def alloc(n):
    global _o
    r = _o; _o = al(_o + n); return r
XH0 = alloc(XSZ); XH1 = alloc(XSZ); XH2 = alloc(XSZ); XH3 = alloc(XSZ)
H1 = alloc(HSZ); H2 = alloc(HSZ)
W1P = alloc(16*20*6*1024)
W2P = alloc(8*48*5*1024)
W2F = alloc(8*68*5*1024)
WP = alloc(XSZ)
SS0 = alloc(16384); SS2 = alloc(16384+8192)
FLG = SS2+16384
B2P = alloc(4096)
STAMP = alloc(4<<20)
WS_END = _o
WSBYTES = 268435456
```

```python
import sys
from asmlib import *
from layout import *
import k1, kcol, kmlp
ks=[k1.build_k1(), kcol.build_k2(), kmlp.build_k3(), kcol.build_k5(), kmlp.build_k5()]
open(sys.argv[1],'w').write(module(ks,ks))
```

```python
import sys
from asmlib import *
from layout import *
import k1, kcol, kmlp
ks=[k1.build_k1(), kcol.build_k2(), kmlp.build_k3(), kcol.build_k5(), kmlp.build_k5()]
j=int(sys.argv[2]); idx=int(sys.argv[3])
e=Kern("e_kernel",1,64,0,16)
e.e(f"""
s_cmp_ge_u32 s2, 1
s_cbranch_scc1 E_end
s_load_dwordx2 s[8:9], s[0:1], 80
s_mov_b32 s10, 0x10000000
s_mov_b32 s11, 0x20000
v_mov_b32 v1, 0
s_mov_b32 s4, {STAMP + j*256*8*128 + idx*8}
s_waitcnt lgkmcnt(0)
buffer_load_dword v2, v1, s[8:11], s4 offen
s_waitcnt vmcnt(0)
v_readfirstlane_b32 s5, v2
s_mov_b32 s7, 0
E_loop:
s_memrealtime s[12:13]
s_add_u32 s7, s7, 1
s_waitcnt lgkmcnt(0)
s_sub_u32 s6, s12, s5
s_cmp_gt_u32 s7, 100000
s_cbranch_scc1 E_end
s_cmp_lt_u32 s6, 10000
s_cbranch_scc1 E_loop
E_end:
s_endpgm""")
open(sys.argv[1],'w').write(module(ks+[e],ks+[e]))
```
